```python
import torch

def _softmax(x, axis=-1):
    return torch.softmax(x, dim=axis)
def _gelu(x):
    return torch.nn.functional.gelu(x, approximate="tanh")
def _silu(x):
    return torch.nn.functional.silu(x)
def _sigmoid(x):
    return torch.sigmoid(x)
def _layernorm(x, axis=-1, eps=1e-5):
    m = x.mean(dim=axis, keepdim=True)
    v = x.var(dim=axis, keepdim=True, unbiased=False)
    return (x - m) / torch.sqrt(v + eps)
def _scatter_add(tgt, idx, src, axis=0):
    return tgt.clone().index_add_(axis, idx, src)
def _segment_sum(src, seg, n):
    out = torch.zeros((n,) + src.shape[1:], dtype=src.dtype)
    return out.index_add_(0, seg, src)
def _pad(x, pw):
    flat = tuple(v for pair in reversed(pw) for v in pair)
    return torch.nn.functional.pad(x, flat)

kernel_name = 'interleave_layers__sliding_local_dilated__sliding_local_dilated__prompt'

def setup_inputs():

    _w = (lambda a: (lambda t: t.to(torch.bfloat16) if t.is_floating_point() else t)(torch.as_tensor(a)))
    def _A_setup():
        B, S, D = 1, 2048, 1024
        return {
            "x": _w((lambda *s: torch.randn(*s, dtype=torch.bfloat16) * 0.05)(B, S, D)),
            "wqkv": _w((lambda *s: torch.randn(*s, dtype=torch.bfloat16) * 0.05)(D, 3 * D)),
            "wo": _w((lambda *s: torch.randn(*s, dtype=torch.bfloat16) * 0.05)(D, D)),
        }
    _A_in = _A_setup()

    def _B_setup():
        B, S, D = 1, 2048, 1024
        return {
            "x": _w((lambda *s: torch.randn(*s, dtype=torch.bfloat16) * 0.05)(B, S, D)),
            "wqkv": _w((lambda *s: torch.randn(*s, dtype=torch.bfloat16) * 0.05)(D, 3 * D)),
            "wo": _w((lambda *s: torch.randn(*s, dtype=torch.bfloat16) * 0.05)(D, D)),
        }
    _B_in = _B_setup()

    return {
        "A_x": _A_in["x"],
        "A_wqkv": _A_in["wqkv"],
        "A_wo": _A_in["wo"],
        "B_x": _B_in["x"],
        "B_wqkv": _B_in["wqkv"],
        "B_wo": _B_in["wo"],
    }

def reference(A_x, A_wqkv, A_wo, B_x, B_wqkv, B_wo):
    def _A_ref(x, wqkv, wo):
        B, S, D = x.shape
        H = 32; Dh = D // H
        W, dil = 8, 2
        qkv = (lambda x, *d: x.permute(*d))((x @ wqkv).reshape(B, S, 3, H, Dh), 2, 0, 3, 1, 4)
        q, k, v = qkv[0], qkv[1], qkv[2]
        scale = Dh ** -0.5
        pos = torch.arange(S)
        off = torch.arange(W) * dil
        idx = pos[:, None] - off[None, :]
        mask = idx >= 0
        idx_c = torch.where(mask, idx, 0).reshape(-1)
        kg = k[:, :, idx_c, :].reshape(B, H, S, W, Dh)
        vg = v[:, :, idx_c, :].reshape(B, H, S, W, Dh)
        logits = torch.einsum("bhsd,bhswd->bhsw", q, kg) * scale
        logits = torch.where(mask[None, None, :, :], logits, -1e9)
        attn = _softmax(logits, axis=-1)
        o = torch.einsum("bhsw,bhswd->bhsd", attn, vg)
        return (lambda x, *d: x.permute(*d))(o, 0, 2, 1, 3).reshape(B, S, D) @ wo

    def _B_ref(x, wqkv, wo):
        B, S, D = x.shape
        H = 32; Dh = D // H
        W, dil = 8, 2
        qkv = (lambda x, *d: x.permute(*d))((x @ wqkv).reshape(B, S, 3, H, Dh), 2, 0, 3, 1, 4)
        q, k, v = qkv[0], qkv[1], qkv[2]
        scale = Dh ** -0.5
        pos = torch.arange(S)
        off = torch.arange(W) * dil
        idx = pos[:, None] - off[None, :]
        mask = idx >= 0
        idx_c = torch.where(mask, idx, 0).reshape(-1)
        kg = k[:, :, idx_c, :].reshape(B, H, S, W, Dh)
        vg = v[:, :, idx_c, :].reshape(B, H, S, W, Dh)
        logits = torch.einsum("bhsd,bhswd->bhsw", q, kg) * scale
        logits = torch.where(mask[None, None, :, :], logits, -1e9)
        attn = _softmax(logits, axis=-1)
        o = torch.einsum("bhsw,bhswd->bhsd", attn, vg)
        return (lambda x, *d: x.permute(*d))(o, 0, 2, 1, 3).reshape(B, S, D) @ wo

    x = A_x
    x = x + _A_ref(_layernorm(x, axis=-1), A_wqkv, A_wo)
    x = x + _B_ref(_layernorm(x, axis=-1), B_wqkv, B_wo)
    x = x + _A_ref(_layernorm(x, axis=-1), A_wqkv, A_wo)
    x = x + _B_ref(_layernorm(x, axis=-1), B_wqkv, B_wo)
    return x
```

```python
import re

REG_RE = re.compile(r'(?<![\w.])([vsa])(\d+)(?![\w\[])|(?<![\w.])([vsa])\[(\d+):(\d+)\]')

def regs_of(tok):
    out = set()
    for m in REG_RE.finditer(tok):
        if m.group(1):
            out.add((m.group(1), int(m.group(2))))
        else:
            for i in range(int(m.group(4)), int(m.group(5)) + 1):
                out.add((m.group(3), i))
    t = tok.strip()
    if t in ('vcc', 'vcc_lo', 'vcc_hi'):
        out.add(('s', 'vcc'))
    if t in ('exec', 'exec_lo', 'exec_hi'):
        out.add(('s', 'exec'))
    if t == 'm0':
        out.add(('s', 'm0'))
    return out

TRANS = ('v_exp_f32', 'v_log_f32', 'v_rcp_f32', 'v_rsq_f32', 'v_sqrt_f32', 'v_sin_f32', 'v_cos_f32', 'v_rcp_iflag_f32')

class Ins:
    __slots__ = ('text', 'op', 'ops', 'kind', 'wr', 'rd', 'srcc', 'passes', 'states', 'wide_store', 'ab')
    def __init__(self, text):
        self.text = text
        t = text.split(';')[0].strip()
        self.kind = 'other'
        self.wr = set(); self.rd = set(); self.srcc = set(); self.passes = 0
        self.states = 1
        self.wide_store = False
        if not t or t.endswith(':') or t.startswith('.'):
            self.kind = 'label' if t.endswith(':') else 'none'
            self.op = ''; self.ops = []; self.states = 0
            return
        sp = t.split(None, 1)
        self.op = op = sp[0]
        rest = sp[1] if len(sp) > 1 else ''
        ops = [x.strip() for x in re.split(r',\s*(?![^\[]*\])', rest)] if rest else []
        self.ops = ops
        first = ops[0].split()[0] if ops else ''
        clean = [o.split()[0] if o else '' for o in ops]
        R = lambda lst: set().union(*[regs_of(x) for x in lst]) if lst else set()
        if op == 's_nop':
            self.kind = 'nop'; self.states = int(rest, 0) + 1
        elif op.startswith('v_mfma'):
            self.kind = 'mfma'
            self.wr = regs_of(clean[0]); self.rd = R(clean[1:4]); self.srcc = regs_of(clean[3])
            self.ab = None
            self.passes = 8 if '32x32' in op else 4
        elif op.startswith('v_cmp'):
            self.kind = 'valu'
            self.wr = regs_of(clean[0]); self.rd = R(clean[1:])
            if op.startswith('v_cmpx'):
                self.wr.add(('s', 'exec'))
        elif op.startswith('v_permlane'):
            self.kind = 'valu'
            self.wr = R(clean[0:2]); self.rd = R(clean[0:2])
        elif op.startswith('v_readfirstlane') or op.startswith('v_readlane'):
            self.kind = 'valu'
            self.wr = regs_of(clean[0]); self.rd = R(clean[1:])
        elif op.startswith('v_'):
            self.kind = 'valu'
            self.wr = regs_of(clean[0]); self.rd = R(clean[1:])
            if op.startswith(('v_add_co', 'v_sub_co', 'v_addc_co', 'v_subb_co', 'v_subrev_co')):
                self.wr |= regs_of(clean[1]); self.rd = R(clean[2:])
            if op.startswith(('v_fmac', 'v_dot2c', 'v_pk_fmac', 'v_writelane')) or 'dpp' in op or 'row_' in t or 'quad_perm' in t:
                self.rd |= self.wr
            if op.startswith('v_cndmask') and len(clean) == 3:
                self.rd.add(('s', 'vcc'))
        elif op.startswith('ds_'):
            self.kind = 'ds'
            if op.startswith(('ds_read', 'ds_bpermute', 'ds_permute', 'ds_swizzle')):
                self.wr = regs_of(clean[0]); self.rd = R(clean[1:])
            else:
                self.rd = R(clean)
        elif op.startswith(('buffer_', 'global_')):
            self.kind = 'vmem'
            islds = re.search(r'\blds\b', t) is not None or 'load_lds' in op
            if op in ('buffer_wbl2', 'buffer_inv'):
                pass
            elif 'load' in op and not islds:
                self.wr = regs_of(clean[0]); self.rd = R(clean[1:])
            elif 'atomic' in op and ' sc0' in t:
                self.wr = regs_of(clean[0]); self.rd = R(clean)
            else:
                self.rd = R(clean)
            if islds:
                self.rd.add(('s', 'm0'))
        elif op.startswith('s_'):
            self.kind = 'salu'
            if op.startswith(('s_cmp', 's_cbranch', 's_branch', 's_barrier', 's_waitcnt', 's_endpgm', 's_setprio', 's_sleep', 's_bitcmp')):
                self.rd = R(clean)
            else:
                self.wr = regs_of(clean[0]) if clean else set(); self.rd = R(clean[1:])
                if 'saveexec' in op:
                    self.wr.add(('s', 'exec'))
        self.wide_store = self.kind == 'vmem' and 'store' in op and ('x4' in op or 'x3' in op)

def required(prod, cons):
    need = 0
    vw = {r for r in prod.wr if r[0] in 'va'}
    sw = {r for r in prod.wr if r[0] == 's'}
    if prod.kind == 'valu':
        if cons.kind == 'mfma' and (vw & cons.rd):
            need = max(need, 2)
        if cons.op.startswith('v_permlane') and (vw & cons.rd):
            need = max(need, 2)
        if cons.kind == 'valu' and ('dpp' in cons.op or 'row_' in cons.text or 'quad_perm' in cons.text) and (vw & cons.rd):
            need = max(need, 2)
        if cons.op.startswith(('v_readfirstlane', 'v_readlane')) and (vw & cons.rd):
            need = max(need, 1)
        if prod.op.replace('_e32', '').replace('_e64', '') in TRANS and cons.kind in ('valu',) and (vw & cons.rd):
            need = max(need, 1)
        if sw:
            if cons.kind == 'vmem' and (sw & cons.rd):
                need = max(need, 5)
            if cons.kind in ('valu', 'mfma') and (sw & cons.rd):
                if cons.op.startswith(('v_readlane', 'v_writelane')):
                    need = max(need, 4)
                else:
                    need = max(need, 2)
            if ('s', 'exec') in sw:
                if cons.kind == 'mfma': need = max(need, 4)
                if cons.op.startswith(('v_readlane', 'v_readfirstlane', 'v_writelane', 'v_permlane')): need = max(need, 4)
                if 'dpp' in cons.op or 'row_' in cons.text or 'quad_perm' in cons.text: need = max(need, 5)
            if cons.kind == 'salu' and (sw & cons.rd):
                need = max(need, 4)
    if prod.kind == 'salu' and ('s', 'm0') in prod.wr and ('s', 'm0') in cons.rd and cons.kind == 'vmem':
        need = max(need, 1)
    if prod.kind == 'mfma':
        p = prod.passes
        raw = {4: 8, 8: 12}[p]
        if cons.kind == 'mfma':
            ab = cons.rd - cons.srcc if False else None
            cl = [o.split()[0] for o in cons.ops]
            abregs = regs_of(cl[1]) | regs_of(cl[2])
            if vw & abregs:
                need = max(need, raw)
            if vw & cons.srcc:
                if not (vw == cons.srcc and prod.passes == cons.passes):
                    need = max(need, {4: 6, 8: 10}[p])
            if (vw & cons.wr) and not (vw & cons.srcc):
                need = max(need, raw)
        elif cons.kind in ('valu', 'ds', 'vmem'):
            if vw & (cons.rd | cons.wr):
                need = max(need, raw)
        if cons.kind == 'valu' and (prod.srcc & cons.wr):
            need = max(need, {4: 3, 8: 7}[p])
    if getattr(prod, 'wide_store', False):
        data = {r for r in prod.rd if r[0] in 'va'}
        if (data & cons.wr):
            need = max(need, 2)
    return need

def fix_hazards(lines, insert=True, window=24):
    out = []
    hist = []
    pos = 0
    for ln in lines:
        ins = Ins(ln)
        if ins.kind in ('label', 'none'):
            out.append(ln)
            continue
        need_extra = 0
        for (p, ppos) in reversed(hist[-window:]):
            dist = pos - ppos - p.states
            req = required(p, ins)
            if req > dist:
                need_extra = max(need_extra, req - dist)
        if need_extra:
            if not insert:
                raise RuntimeError('hazard: need %d more states before: %s' % (need_extra, ln))
            n = need_extra
            while n > 0:
                k = min(n, 16)
                out.append('  s_nop %d' % (k - 1))
                nop = Ins('s_nop %d' % (k - 1))
                hist.append((nop, pos)); pos += k
                n -= k
        out.append(ln)
        hist.append((ins, pos)); pos += ins.states
    return out

class Asm:
    def __init__(self):
        self.lines = []
    def __call__(self, s):
        for l in s.split('\n'):
            l = l.strip()
            if l:
                self.lines.append(l if l.endswith(':') or l.startswith('.') else '  ' + l)
    def label(self, name):
        self.lines.append(name + ':')
    def extend(self, other):
        self.lines.extend(other.lines if isinstance(other, Asm) else other)

def vr(base, n=1):
    return 'v%d' % base if n == 1 else 'v[%d:%d]' % (base, base + n - 1)
def sr(base, n=1):
    return 's%d' % base if n == 1 else 's[%d:%d]' % (base, base + n - 1)
```

```python
import sys
sys.path.insert(0, 'dev')
from asmlib import Asm, fix_hazards, vr, sr

NAME = 'interleave_layers__sliding_local_dilated__sliding_local_dilated__prompt'
X_OFF = 0
O_OFF = 4 << 20
ST_OFF = 8 << 20
CS_OFF = (8 << 20) + (256 << 10)
OOB = 0x40000000

HEADER = '''; Kernarg layout for this problem (72 bytes, ptrs only, base s[0:1]):
'''

def srd(a, d, base, nbytes, off=0):
    if off:
        a(f's_add_u32 s{d}, s{base}, {off}')
        a(f's_addc_u32 s{d+1}, s{base+1}, 0')
    else:
        a(f's_mov_b32 s{d}, s{base}')
        a(f's_mov_b32 s{d+1}, s{base+1}')
    a(f's_mov_b32 s{d+2}, {nbytes}')
    a(f's_mov_b32 s{d+3}, 0x20000')

def gen_P():
    a = Asm()
    a.label('p_kernel')
    a('s_cmp_ge_u32 s2, 256')
    a('s_cbranch_scc1 p_done')
    a('s_load_dwordx2 s[4:5], s[0:1], 0')
    a('s_load_dwordx2 s[6:7], s[0:1], 8')
    a('s_load_dwordx2 s[8:9], s[0:1], 32')
    a('s_load_dwordx2 s[10:11], s[0:1], 64')
    a('s_cmp_ge_u32 s2, 192')
    a('s_cbranch_scc1 p_stats')
    a('s_waitcnt lgkmcnt(0)')
    a('s_cmp_ge_u32 s2, 96')
    a('s_cselect_b32 s12, s8, s6')
    a('s_cselect_b32 s13, s9, s7')
    a('s_cselect_b32 s20, 1, 0')
    a('s_mov_b32 s14, %d' % (1024 * 6144))
    a('s_mov_b32 s15, 0x20000')
    srd(a, 16, 10, 4 * 2 * 3072 * 4, CS_OFF)
    a('s_mul_i32 s21, s20, 96')
    a('s_sub_u32 s21, s2, s21')
    a('s_lshr_b32 s22, s21, 2')
    a('s_and_b32 s23, s21, 3')
    a('v_and_b32 v1, 15, v0')
    a('v_lshrrev_b32 v2, 4, v0')
    a('s_mul_i32 s24, s23, %d' % (256 * 6144))
    a('s_lshl_b32 s25, s22, 8')
    a('s_add_u32 s24, s24, s25')
    a('s_mov_b32 s26, 6144')
    a('v_mul_lo_u32 v3, v2, s26')
    a('v_lshl_add_u32 v3, v1, 4, v3')
    for it in range(16):
        a(f'buffer_load_dwordx4 {vr(16 + 4 * it, 4)}, v3, s[12:15], s24 offen')
        if it < 15:
            a(f's_add_u32 s24, s24, {16 * 6144}')
    for e in range(8):
        a(f'v_mov_b32 v{4 + e}, 0')
    for it in range(16):
        a(f's_waitcnt vmcnt({15 - it})')
        for d in range(4):
            r = 16 + 4 * it + d
            a(f'v_lshlrev_b32 v12, 16, v{r}')
            a(f'v_and_b32 v13, 0xffff0000, v{r}')
            a(f'v_add_f32 v{4 + 2 * d}, v{4 + 2 * d}, v12')
            a(f'v_add_f32 v{5 + 2 * d}, v{5 + 2 * d}, v13')
    a('v_lshlrev_b32 v14, 9, v2')
    a('v_lshl_add_u32 v14, v1, 5, v14')
    a('ds_write_b128 v14, v[4:7]')
    a('ds_write_b128 v14, v[8:11] offset:16')
    a('s_waitcnt lgkmcnt(0)')
    a('s_barrier')
    a('v_cmp_gt_u32 vcc, 128, v0')
    a('s_and_saveexec_b64 s[28:29], vcc')
    a('s_cbranch_execz p_done')
    a('v_lshlrev_b32 v14, 2, v0')
    for r in range(16):
        a(f'ds_read_b32 v{16 + r}, v14 offset:{r * 512}')
    a('s_waitcnt lgkmcnt(0)')
    for r in range(1, 16):
        a(f'v_add_f32 v16, v16, v{16 + r}')
    a('s_lshl_b32 s24, s23, 1')
    a('s_add_u32 s24, s24, s20')
    a('s_mul_i32 s24, s24, 12288')
    a('s_lshl_b32 s25, s22, 9')
    a('s_add_u32 s24, s24, s25')
    a('buffer_store_dword v16, v14, s[16:19], s24 offen')
    a('s_endpgm')
    a.label('p_stats')
    a('s_waitcnt lgkmcnt(0)')
    srd(a, 12, 4, 4 << 20)
    srd(a, 16, 10, 256 << 10, ST_OFF)
    a('s_sub_u32 s20, s2, 192')
    a('s_lshl_b32 s20, s20, 5')
    a('v_lshrrev_b32 v1, 6, v0')
    a('v_and_b32 v2, 63, v0')
    a('v_lshl_add_u32 v3, v1, 3, s20')
    a('v_lshlrev_b32 v4, 11, v3')
    a('v_lshl_add_u32 v4, v2, 4, v4')
    for i in range(8):
        for hh in range(2):
            k = 2 * i + hh
            a(f's_mov_b32 s21, {i * 2048 + hh * 1024}')
            a(f'buffer_load_dwordx4 {vr(16 + 4 * k, 4)}, v4, s[12:15], s21 offen')
    a('v_lshrrev_b32 v5, 3, v2')
    a('v_lshlrev_b32 v5, 14, v5')
    a('v_lshl_add_u32 v5, v3, 3, v5')
    a('v_and_b32 v6, 7, v2')
    a('v_cmp_eq_u32 s[22:23], 0, v6')
    for k in range(16):
        a(f's_waitcnt vmcnt({15 - k})')
        sreg, qreg = 80 + 2 * k, 81 + 2 * k
        for d in range(4):
            r = 16 + 4 * k + d
            a(f'v_lshlrev_b32 v12, 16, v{r}')
            a(f'v_and_b32 v13, 0xffff0000, v{r}')
            if d == 0:
                a(f'v_add_f32 v{sreg}, v12, v13')
                a(f'v_mul_f32 v{qreg}, v12, v12')
            else:
                a(f'v_add_f32 v{sreg}, v{sreg}, v12')
                a(f'v_fmac_f32 v{qreg}, v12, v12')
                a(f'v_add_f32 v{sreg}, v{sreg}, v13')
            a(f'v_fmac_f32 v{qreg}, v13, v13')
    for mode in ('quad_perm:[1,0,3,2]', 'quad_perm:[2,3,0,1]', 'row_half_mirror'):
        for q in range(80, 112):
            a(f'v_add_f32_dpp v{q}, v{q}, v{q} {mode} row_mask:0xf bank_mask:0xf')
    a('s_mov_b64 exec, s[22:23]')
    for k in range(16):
        i, hh = k >> 1, k & 1
        a(f's_mov_b32 s21, {hh * 8 * 16384 + i * 8}')
        a(f'buffer_store_dwordx2 {vr(80 + 2 * k, 2)}, v5, s[16:19], s21 offen')
    a.label('p_done')
    a('s_endpgm')
    return fix_hazards(a.lines)

SLOT = 43008
BOFF = 18432
TBL = 3 * SLOT
G1_LDS = TBL + 1920

def g1_entry(L):
    a = Asm()
    a.label(f'g1l{L}_kernel')
    a('s_cmp_ge_u32 s2, 256')
    a('s_cbranch_scc1 g1_done')
    a('s_load_dwordx2 s[30:31], s[0:1], 64')
    a(f's_load_dwordx2 s[26:27], s[0:1], {8 if L % 2 == 0 else 32}')
    if L == 0:
        a('s_load_dwordx2 s[24:25], s[0:1], 0')
    a('s_waitcnt lgkmcnt(0)')
    if L != 0:
        a(f's_add_u32 s24, s30, {X_OFF}')
        a('s_addc_u32 s25, s31, 0')
    a(f's_mov_b32 s28, {L % 2}')
    a('s_branch g1_body')
    return a.lines

def g1_issue(a, slot_s, kA, kB):
    a(f's_add_u32 m0, s{slot_s}, s40')
    for n in range(4):
        a('s_nop 0')
        a(f'buffer_load_dwordx4 v{10 + n}, s[4:7], s{kA} offen lds')
        if n < 3:
            a('s_add_u32 m0, m0, 1024')
    a(f's_add_u32 m0, s{slot_s}, s41')
    a('s_mov_b32 exec_hi, 0')
    a(f'buffer_load_dwordx4 v14, s[4:7], s{kA} offen lds')
    a('s_mov_b32 exec_hi, -1')
    a(f's_add_u32 m0, s{slot_s}, s42')
    for n in range(6):
        a('s_nop 0')
        a(f'buffer_load_dwordx4 v{15 + n}, s[8:11], s{kB} offen lds')
        if n < 5:
            a('s_add_u32 m0, m0, 1024')

QA, KA, VA, HA = 0, 32, 64, 96
F = [dict(x=104, w=124), dict(x=148, w=168)]
XA0, XA1, WA0, WA1 = 192, 193, 194, 195

def g1_reads(fs, hf, kk):
    out = []
    xa = XA0 if kk == 0 else XA1
    xb, wb = F[fs]['x'], F[fs]['w']
    xs = [f'ds_read_b128 {vr(xb + 4 * b, 4)}, v{xa} offset:{(0 if b == 0 else (4 * hf + b)) * 2048}' for b in range(5)]
    ws = []
    for seg in range(3):
        for db in range(2):
            for u in range(2):
                r = wb + (seg * 2 + db) * 4 + 2 * u
                ws.append(f'ds_read_b64_tr_b16 {vr(r, 2)}, v{WA0 + db} offset:{seg * 8192 + kk * 4096 + u * 512}')
    out = ws[0:4] + [xs[1]] + ws[4:8] + [xs[2]] + ws[8:12] + [xs[3], xs[4], xs[0]]
    return out

def g1_mfmas(fs, hf):
    out = []
    xb, wb = F[fs]['x'], F[fs]['w']
    X = lambda b: vr(xb + 4 * b, 4)
    W = lambda seg, db: vr(wb + (seg * 2 + db) * 4, 4)
    for b in range(1, 5):
        for db in range(2):
            q = vr(QA + ((b - 1) * 2 + db) * 4, 4)
            out.append(f'v_mfma_f32_16x16x32_bf16 {q}, {W(0, db)}, {X(b)}, {q}')
        for db in range(2):
            q = vr(KA + ((b - 1) * 2 + db) * 4, 4)
            out.append(f'v_mfma_f32_16x16x32_bf16 {q}, {W(1, db)}, {X(b)}, {q}')
        for db in range(2):
            q = vr(VA + ((b - 1) * 2 + db) * 4, 4)
            out.append(f'v_mfma_f32_16x16x32_bf16 {q}, {X(b)}, {W(2, db)}, {q}')
    for db in range(2):
        q = vr(HA + db * 4, 4)
        if hf == 0:
            out.append(f'v_mfma_f32_16x16x32_bf16 {q}, {W(1, db)}, {X(0)}, {q}')
        else:
            out.append(f'v_mfma_f32_16x16x32_bf16 {q}, {X(0)}, {W(2, db)}, {q}')
    return out

def interleave(a, mf, other, start=0):
    o = list(other)
    for n, m in enumerate(mf):
        a(m)
        if n >= start and o:
            a(o.pop(0))
    for x in o:
        a(x)

def g1_compute(hf):
    a = Asm()
    L = f'g1c{hf}'
    a.label(L)
    a('s_barrier')
    for r in g1_reads(0, hf, 0):
        a(r)
    a('s_mov_b32 s33, 0')
    a('s_mov_b32 s34, 0')
    a(f's_mov_b32 s54, {-2 * SLOT & 0xffffffff}')
    a(f's_mov_b32 s55, {SLOT}')
    a.label(L + '_loop')
    a('s_waitcnt lgkmcnt(0)')
    a('s_cmp_eq_u32 s34, 2')
    a('s_cselect_b32 s35, s54, s55')
    a('s_cselect_b32 s34, -1, s34')
    a('s_add_u32 s34, s34, 1')
    rd = g1_reads(1, hf, 1)
    adv = [f'v_add_u32 v{r}, s35, v{r}' for r in (XA0, XA1, WA0, WA1)]
    interleave(a, g1_mfmas(0, hf), rd + adv)
    a('s_waitcnt lgkmcnt(0)')
    a('s_barrier')
    a('s_cmp_eq_u32 s33, 15')
    a(f's_cbranch_scc1 {L}_last')
    interleave(a, g1_mfmas(1, hf), g1_reads(0, hf, 0))
    a('s_add_u32 s33, s33, 1')
    a(f's_branch {L}_loop')
    a.label(L + '_last')
    T_NM1, T_RS1 = 104, 109
    T_CQ, T_CK = 114, 122
    T_CV = 130
    T_NM4, T_RS4 = 196, 216
    a('v_and_b32 v246, 15, v247')
    a('v_lshrrev_b32 v245, 4, v247')
    a('v_lshlrev_b32 v244, 2, v246')
    a('v_lshlrev_b32 v243, 4, v245')
    a('s_lshl_b32 s36, s31, 7')
    a('v_add_u32 v242, s36, v243')
    a('v_add_u32 v241, s36, v244')
    rds = []
    for b in range(5):
        rb = 0 if b == 0 else 4 * hf + b
        if b > 0 or hf == 0:
            rds.append(f'ds_read_b32 v{T_NM1 + b}, v244 offset:{TBL + rb * 64}')
            rds.append(f'ds_read_b32 v{T_RS1 + b}, v244 offset:{TBL + 576 + rb * 64}')
        if b > 0 or hf == 1:
            rds.append(f'ds_read_b128 {vr(T_NM4 + 4 * b, 4)}, v243 offset:{TBL + rb * 64}')
            rds.append(f'ds_read_b128 {vr(T_RS4 + 4 * b, 4)}, v243 offset:{TBL + 576 + rb * 64}')
    for db in range(2):
        rds.append(f'ds_read_b128 {vr(T_CQ + 4 * db, 4)}, v242 offset:{TBL + 1152 + db * 64}')
        rds.append(f'ds_read_b128 {vr(T_CK + 4 * db, 4)}, v242 offset:{TBL + 1152 + 256 + db * 64}')
        rds.append(f'ds_read_b32 v{T_CV + db}, v241 offset:{TBL + 1152 + 512 + db * 64}')
    rds = [x.replace('v244 offset:', 'v244 offset:') for x in rds]
    fixed = []
    import re
    for x in rds:
        m = re.search(r'offset:(\d+)', x)
        fixed.append(x[:m.start()] + 'offset:%d' % (int(m.group(1)) - TBL))
    for r in (244, 243, 242, 241):
        a(f'v_add_u32 v{r}, {TBL}, v{r}')
    interleave(a, g1_mfmas(1, hf), fixed)
    a('s_waitcnt lgkmcnt(0)')
    QF, KF = 132, 148
    VF = [168, 178]
    CL = 188
    TMP = 236
    SC = 0.17677669529663687 * 1.4426950408889634
    import struct
    scbits = struct.unpack('<I', struct.pack('<f', SC))[0]
    a(f's_mov_b32 s37, {scbits}')
    def conv1(acc, dst, cs, nm, rs):
        for db in range(2):
            for hh in range(2):
                p = vr(acc + db * 4 + 2 * hh, 2)
                a(f'v_pk_fma_f32 {p}, {vr(cs + db * 4 + 2 * hh, 2)}, {vr(nm & ~1, 2)}, {p} op_sel:[0,{nm & 1},0] op_sel_hi:[1,{nm & 1},1]')
                if rs is not None:
                    a(f'v_pk_mul_f32 {p}, {p}, {vr(rs & ~1, 2)} op_sel:[0,{rs & 1}] op_sel_hi:[1,{rs & 1}]')
        for db in range(2):
            for hh in range(2):
                a(f'v_cvt_pk_bf16_f32 v{dst + db * 2 + hh}, v{acc + db * 4 + 2 * hh}, v{acc + db * 4 + 2 * hh + 1}')
    def conv2(acc, b):
        for db in range(2):
            cv = T_CV + db
            for hh in range(2):
                p = vr(acc + db * 4 + 2 * hh, 2)
                a(f'v_pk_fma_f32 {p}, {vr(T_NM4 + 4 * b + 2 * hh, 2)}, {vr(cv & ~1, 2)}, {p} op_sel:[0,{cv & 1},0] op_sel_hi:[1,{cv & 1},1]')
                a(f'v_pk_mul_f32 {p}, {p}, {vr(T_RS4 + 4 * b + 2 * hh, 2)}')
        for db in range(2):
            for hh in range(2):
                a(f'v_cvt_pk_bf16_f32 v{VF[db] + 2 * b + hh}, v{acc + db * 4 + 2 * hh}, v{acc + db * 4 + 2 * hh + 1}')
    EX = 'v240'
    a('s_lshl_b32 s36, s31, 12')
    a('v_lshlrev_b32 v240, 4, v247')
    a('v_add_u32 v240, s36, v240')
    a('v_lshlrev_b32 v239, 3, v247')
    a('v_add_u32 v239, s36, v239')
    if hf == 0:
        conv1(KA + 3 * 8, KF + 16, T_CK, T_NM1 + 4, T_RS1 + 4)
        conv2(VA + 3 * 8, 4)
        a(f'ds_write_b128 v240, {vr(KF + 16, 4)}')
        a(f'ds_write_b64 v239, {vr(VF[0] + 8, 2)} offset:1024')
        a(f'ds_write_b64 v239, {vr(VF[1] + 8, 2)} offset:1536')
        conv1(HA, KF, T_CK, T_NM1, T_RS1)
        rest_k, rest_v = (1, 2, 3), (1, 2, 3)
    else:
        conv2(HA, 0)
        a(f'ds_write_b64 v239, {vr(VF[0], 2)} offset:2048')
        a(f'ds_write_b64 v239, {vr(VF[1], 2)} offset:2560')
        rest_k, rest_v = (1, 2, 3, 4), (1, 2, 3, 4)
    a('s_waitcnt lgkmcnt(0)')
    a('s_barrier')
    if hf == 0:
        a(f'ds_read_b64 {vr(VF[0], 2)}, v239 offset:2048')
        a(f'ds_read_b64 {vr(VF[1], 2)}, v239 offset:2560')
    else:
        a(f'ds_read_b128 {vr(KF, 4)}, v240')
        a(f'ds_read_b64 {vr(VF[0], 2)}, v239 offset:1024')
        a(f'ds_read_b64 {vr(VF[1], 2)}, v239 offset:1536')
    for b in range(1, 5):
        conv1(QA + (b - 1) * 8, QF + (b - 1) * 4, T_CQ, T_NM1 + b, None)
        a(f'v_mul_f32 v{CL + b - 1}, s37, v{T_RS1 + b}')
    for b in rest_k:
        conv1(KA + (b - 1) * 8, KF + 4 * b, T_CK, T_NM1 + b, T_RS1 + b)
    for b in rest_v:
        conv2(VA + (b - 1) * 8, b)
    BP, BC, BP1 = 0, 4, 8
    ONES = 12
    a('s_mov_b32 s38, 0xff800000')
    for r in range(4):
        a(f'v_lshl_add_u32 v100, v245, 2, {r}')
        a('v_sub_u32 v100, v100, v246')
        a('v_and_b32 v101, 1, v100')
        a('v_cmp_eq_u32 s[44:45], 0, v101')
        a('v_cmp_le_i32 s[46:47], 2, v100')
        a('v_cmp_ge_i32 s[48:49], 0, v100')
        a('s_and_b64 s[46:47], s[46:47], s[44:45]')
        a('s_and_b64 s[48:49], s[48:49], s[44:45]')
        a(f'v_mov_b32 v102, s38')
        a(f'v_cndmask_b32 v{BP + r}, v102, 0, s[46:47]')
        a(f'v_cndmask_b32 v{BC + r}, v102, 0, s[48:49]')
        if hf == 0:
            a('s_cmp_eq_u32 s29, 0')
            a('s_cselect_b64 s[46:47], 0, s[46:47]')
        a(f'v_cndmask_b32 v{BP1 + r}, v102, 0, s[46:47]')
        a(f'v_mov_b32 v{ONES + r}, 0x3f803f80')
    a('v_and_b32 v100, 1, v245')
    a('v_lshlrev_b32 v100, 5, v100')
    a('v_lshrrev_b32 v101, 1, v245')
    a('v_lshl_add_u32 v100, v101, 4, v100')
    a('v_lshl_add_u32 v100, v246, 11, v100')
    a('s_lshl_b32 s36, s29, 18')
    a(f's_add_u32 s36, s36, {hf * 64 * 2048}')
    a('s_lshl_b32 s39, s30, 7')
    a('s_add_u32 s36, s36, s39')
    a('s_lshl_b32 s39, s31, 6')
    a('s_add_u32 s36, s36, s39')
    a('v_add_u32 v100, s36, v100')
    OADDR = 100
    a('s_waitcnt lgkmcnt(0)')
    base = lambda b: 16 + (b - 1) * 20
    SPr = lambda b: base(b)
    SCu = lambda b: base(b) + 4
    PP = lambda b: base(b) + 8
    MX = lambda b: base(b) + 12
    MT = lambda b: base(b) + 13
    SUM = lambda b: 196 + (b - 1) * 12
    O0 = lambda b: 196 + (b - 1) * 12 + 4
    O1 = lambda b: 196 + (b - 1) * 12 + 8
    for b in range(1, 5):
        q = vr(QF + (b - 1) * 4, 4)
        a(f'v_mfma_f32_16x16x32_bf16 {vr(SPr(b), 4)}, {vr(KF + 4 * (b - 1), 4)}, {q}, 0')
        a(f'v_mfma_f32_16x16x32_bf16 {vr(SCu(b), 4)}, {vr(KF + 4 * b, 4)}, {q}, 0')
    for b in range(1, 5):
        for r in range(4):
            bp = (BP1 if b == 1 else BP) + r
            a(f'v_fma_f32 v{SPr(b) + r}, v{SPr(b) + r}, v{CL + b - 1}, v{bp}')
            a(f'v_fma_f32 v{SCu(b) + r}, v{SCu(b) + r}, v{CL + b - 1}, v{BC + r}')
    for b in range(1, 5):
        s, c = SPr(b), SCu(b)
        a(f'v_max3_f32 v{MX(b)}, v{s}, v{s + 1}, v{s + 2}')
        a(f'v_max3_f32 v{MT(b)}, v{s + 3}, v{c}, v{c + 1}')
        a(f'v_max3_f32 v{MX(b)}, v{MX(b)}, v{c + 2}, v{c + 3}')
        a(f'v_max_f32 v{MX(b)}, v{MX(b)}, v{MT(b)}')
    for swap in ('v_permlane32_swap_b32', 'v_permlane16_swap_b32'):
        for b in range(1, 5):
            a(f'v_mov_b32 v{MT(b)}, v{MX(b)}')
        for b in range(1, 5):
            a(f'{swap} v{MX(b)}, v{MT(b)}')
        for b in range(1, 5):
            a(f'v_max_f32 v{MX(b)}, v{MX(b)}, v{MT(b)}')
    for b in range(1, 5):
        for r in range(8):
            a(f'v_sub_f32 v{SPr(b) + r}, v{SPr(b) + r}, v{MX(b)}')
    for b in range(1, 5):
        for r in range(8):
            a(f'v_exp_f32 v{SPr(b) + r}, v{SPr(b) + r}')
    for b in range(1, 5):
        for r in range(4):
            a(f'v_cvt_pk_bf16_f32 v{PP(b) + r}, v{SPr(b) + 2 * r}, v{SPr(b) + 2 * r + 1}')
    for b in range(1, 5):
        p = vr(PP(b), 4)
        a(f'v_mfma_f32_16x16x32_bf16 {vr(SUM(b), 4)}, {vr(ONES, 4)}, {p}, 0')
        a(f'v_mfma_f32_16x16x32_bf16 {vr(O0(b), 4)}, {vr(VF[0] + 2 * (b - 1), 4)}, {p}, 0')
        a(f'v_mfma_f32_16x16x32_bf16 {vr(O1(b), 4)}, {vr(VF[1] + 2 * (b - 1), 4)}, {p}, 0')
    for b in range(1, 5):
        a(f'v_rcp_f32 v{SUM(b)}, v{SUM(b)}')
    for b in range(1, 5):
        for o in (O0(b), O1(b)):
            for hh in range(2):
                s = SUM(b)
                a(f'v_pk_mul_f32 {vr(o + 2 * hh, 2)}, {vr(o + 2 * hh, 2)}, {vr(s & ~1, 2)} op_sel:[0,{s & 1}] op_sel_hi:[1,{s & 1}]')
    for b in range(1, 5):
        a(f'v_cvt_pk_bf16_f32 v{PP(b)}, v{O0(b)}, v{O0(b) + 1}')
        a(f'v_cvt_pk_bf16_f32 v{PP(b) + 1}, v{O0(b) + 2}, v{O0(b) + 3}')
        a(f'v_cvt_pk_bf16_f32 v{PP(b) + 2}, v{O1(b)}, v{O1(b) + 1}')
        a(f'v_cvt_pk_bf16_f32 v{PP(b) + 3}, v{O1(b) + 2}, v{O1(b) + 3}')
    for b in range(1, 5):
        a(f'v_permlane16_swap_b32 v{PP(b)}, v{PP(b) + 2}')
        a(f'v_permlane16_swap_b32 v{PP(b) + 1}, v{PP(b) + 3}')
    for b in range(1, 5):
        a(f's_mov_b32 s36, {(b - 1) * 16 * 2048}')
        a(f'buffer_store_dwordx4 {vr(PP(b), 4)}, v{OADDR}, s[12:15], s36 offen')
    a('s_endpgm')
    return a

def gen_G1():
    a = Asm()
    a.label('g1_body')
    srd(a, 4, 24, 4 << 20)
    srd(a, 8, 26, 1024 * 6144)
    srd(a, 12, 30, 4 << 20, O_OFF)
    srd(a, 16, 30, 256 << 10, ST_OFF)
    srd(a, 20, 30, 4 * 2 * 3072 * 4, CS_OFF)
    a('s_and_b32 s32, s2, 7')
    a('s_lshr_b32 s33, s2, 3')
    a('s_and_b32 s29, s32, 1')
    a('s_lshl_b32 s29, s29, 3')
    a('s_and_b32 s34, s33, 7')
    a('s_add_u32 s29, s29, s34')
    a('s_lshr_b32 s30, s32, 1')
    a('s_lshl_b32 s30, s30, 2')
    a('s_lshr_b32 s34, s33, 3')
    a('s_add_u32 s30, s30, s34')
    a('v_lshrrev_b32 v1, 6, v0')
    a('v_readfirstlane_b32 s32, v1')
    a('v_and_b32 v247, 63, v0')
    a('s_cmp_ge_u32 s32, 4')
    a('s_cbranch_scc1 g1_loader')
    a('s_and_b32 s31, s32, 1')
    a('v_and_b32 v1, 15, v247')
    a('v_lshrrev_b32 v2, 4, v247')
    a('v_lshrrev_b32 v3, 1, v1')
    a('v_xor_b32 v4, v2, v3')
    a('v_lshlrev_b32 v4, 4, v4')
    a(f'v_lshl_add_u32 v{XA0}, v1, 7, v4')
    a(f'v_xor_b32 v{XA1}, 64, v{XA0}')
    a('v_lshrrev_b32 v3, 2, v1')
    a('v_and_b32 v4, 3, v1')
    a('v_lshrrev_b32 v5, 1, v3')
    a('v_and_b32 v6, 1, v2')
    a('v_lshl_or_b32 v5, v6, 1, v5')
    a('v_lshlrev_b32 v5, 1, v5')
    a('v_lshrrev_b32 v6, 1, v4')
    a('s_lshl_b32 s33, s31, 2')
    a('v_add_u32 v6, s33, v6')
    a('v_xor_b32 v6, v6, v5')
    a('v_lshlrev_b32 v6, 4, v6')
    a('v_and_b32 v7, 1, v4')
    a('v_lshl_add_u32 v6, v7, 3, v6')
    a('v_lshl_add_u32 v7, v2, 3, v3')
    a('v_lshl_add_u32 v6, v7, 7, v6')
    a(f'v_add_u32 v{WA0}, {BOFF}, v6')
    a(f'v_xor_b32 v{WA1}, 32, v{WA0}')
    for r in range(104):
        a(f'v_mov_b32 v{r}, 0')
    a('s_cmp_ge_u32 s32, 2')
    a('s_cbranch_scc1 g1c1')
    a.extend(g1_compute(0))
    a.extend(g1_compute(1))
    a.label('g1_loader')
    a('s_sub_u32 s32, s32, 4')
    a('s_lshl_b32 s40, s32, 12')
    a('s_lshl_b32 s41, s32, 9')
    a('s_add_u32 s41, s41, 16384')
    a('s_mul_i32 s42, s32, 6144')
    a(f's_add_u32 s42, s42, {BOFF}')
    a('v_lshrrev_b32 v1, 3, v247')
    a('v_and_b32 v2, 7, v247')
    a('s_lshl_b32 s33, s32, 6')
    a('v_add_u32 v3, s33, v247')
    a('s_lshl_b32 s34, s29, 7')
    a('s_sub_u32 s34, s34, 16')
    a('v_add_u32 v4, s34, v3')
    a('v_cmp_le_u32 vcc, 144, v3')
    a('s_mov_b64 s[44:45], vcc')
    a('v_cmp_gt_i32 vcc, 0, v4')
    a('s_or_b64 vcc, vcc, s[44:45]')
    a('v_lshlrev_b32 v4, 3, v4')
    a(f'v_mov_b32 v5, {OOB}')
    a('v_cndmask_b32 v4, v4, v5, vcc')
    for jj in range(16):
        a(f's_mov_b32 s35, {jj * 16384}')
        a(f'buffer_load_dwordx2 {vr(32 + 2 * jj, 2)}, v4, s[16:19], s35 offen')
    a('v_lshrrev_b32 v6, 6, v3')
    a('v_lshlrev_b32 v6, 10, v6')
    a('v_and_b32 v7, 63, v3')
    a('v_add_u32 v6, v6, v7')
    a('s_lshl_b32 s35, s30, 6')
    a('v_add_u32 v6, s35, v6')
    a('v_lshlrev_b32 v6, 2, v6')
    a('v_cmp_le_u32 vcc, 192, v3')
    a('s_nop 1')
    a('v_cndmask_b32 v6, v6, v5, vcc')
    a('s_mul_i32 s36, s28, 12288')
    for kq in range(4):
        a(f'buffer_load_dword v{64 + kq}, v6, s[20:23], s36 offen')
        if kq < 3:
            a('s_add_u32 s36, s36, 24576')
    a('v_lshrrev_b32 v7, 1, v1')
    a('s_lshl_b32 s35, s32, 5')
    a('s_add_u32 s35, s35, s34')
    for n in range(4):
        a(f'v_add_u32 v8, {8 * n}, v1')
        a('v_add_u32 v8, s35, v8')
        a(f'v_xor_b32 v9, {4 * (n & 1)}, v7')
        a('v_xor_b32 v9, v9, v2')
        a('v_lshlrev_b32 v9, 4, v9')
        a('v_lshl_add_u32 v9, v8, 11, v9')
        a('v_cmp_gt_i32 vcc, 0, v8')
        a('s_nop 1')
        a(f'v_cndmask_b32 v{10 + n}, v9, v5, vcc')
    a('s_lshl_b32 s36, s32, 2')
    a('s_add_u32 s36, s36, s34')
    a('s_add_u32 s36, s36, 128')
    a('v_add_u32 v8, s36, v1')
    a('s_lshl_b32 s36, s32, 1')
    a('v_add_u32 v9, s36, v7')
    a('v_and_b32 v9, 7, v9')
    a('v_xor_b32 v9, v9, v2')
    a('v_lshlrev_b32 v9, 4, v9')
    a('v_lshl_add_u32 v14, v8, 11, v9')
    a('v_and_b32 v7, 1, v7')
    a('s_mov_b32 s37, 6144')
    a('v_mul_lo_u32 v8, v1, s37')
    for n in range(6):
        a(f'v_or_b32 v9, {(n & 1) << 1}, v7')
        a('v_lshlrev_b32 v9, 1, v9')
        a('v_xor_b32 v9, v9, v2')
        a('v_lshl_add_u32 v9, v9, 4, v8')
        a('s_mul_i32 s36, s32, 6')
        a(f's_add_u32 s36, s36, {n}')
        a('s_lshr_b32 s38, s36, 3')
        a('s_and_b32 s36, s36, 7')
        a(f's_mul_i32 s36, s36, {8 * 6144}')
        a('s_lshl_b32 s38, s38, 11')
        a('s_add_u32 s36, s36, s38')
        a('s_lshl_b32 s38, s30, 7')
        a('s_add_u32 s36, s36, s38')
        a(f'v_add_u32 v{15 + n}, s36, v9')
    for st in range(3):
        a(f's_mov_b32 s50, {st * SLOT}')
        a(f's_mov_b32 s51, {st * 128}')
        a(f's_mov_b32 s52, {st * 64 * 6144}')
        g1_issue(a, 50, 51, 52)
    a('s_waitcnt vmcnt(33)')
    for jj in range(1, 16):
        a(f'v_add_f32 v32, v32, v{32 + 2 * jj}')
        a(f'v_add_f32 v33, v33, v{33 + 2 * jj}')
    a('v_mul_f32 v32, 0x3a800000, v32')
    a('v_mul_f32 v33, 0x3a800000, v33')
    a('v_fma_f32 v33, -v32, v32, v33')
    a('v_max_f32 v33, 0, v33')
    a('v_add_f32 v33, 0x3727c5ac, v33')
    a('v_rsq_f32 v33, v33')
    a('v_sub_f32 v32, 0, v32')
    a('v_add_f32 v64, v64, v65')
    a('v_add_f32 v66, v66, v67')
    a('v_add_f32 v64, v64, v66')
    a('v_lshlrev_b32 v4, 2, v3')
    a(f'v_add_u32 v4, {TBL}, v4')
    a('v_cmp_gt_u32 vcc, 144, v3')
    a('s_and_saveexec_b64 s[44:45], vcc')
    a('s_cbranch_execz g1_l_t1')
    a('ds_write_b32 v4, v32')
    a('ds_write_b32 v4, v33 offset:576')
    a.label('g1_l_t1')
    a('s_mov_b64 exec, s[44:45]')
    a('v_cmp_gt_u32 vcc, 192, v3')
    a('s_and_saveexec_b64 s[44:45], vcc')
    a('s_cbranch_execz g1_l_t2')
    a('ds_write_b32 v4, v64 offset:1152')
    a.label('g1_l_t2')
    a('s_mov_b64 exec, s[44:45]')
    a('s_waitcnt vmcnt(22) lgkmcnt(0)')
    a('s_barrier')
    a('s_mov_b32 s50, 0')
    a(f's_mov_b32 s51, {3 * 128}')
    a(f's_mov_b32 s52, {3 * 64 * 6144}')
    a('s_mov_b32 s53, 0')
    a.label('g1_l_loop')
    a('s_waitcnt vmcnt(11)')
    a('s_barrier')
    g1_issue(a, 50, 51, 52)
    a(f's_add_u32 s50, s50, {SLOT}')
    a(f's_cmp_eq_u32 s50, {3 * SLOT}')
    a('s_cselect_b32 s50, 0, s50')
    a('s_add_u32 s51, s51, 128')
    a(f's_add_u32 s52, s52, {64 * 6144}')
    a('s_add_u32 s53, s53, 1')
    a('s_cmp_lt_u32 s53, 13')
    a('s_cbranch_scc1 g1_l_loop')
    a('s_waitcnt vmcnt(11)')
    a('s_barrier')
    a('s_waitcnt vmcnt(0)')
    a('s_barrier')
    a('s_barrier')
    a.label('g1_done')
    a('s_endpgm')
    return fix_hazards(a.lines)

G2_LDS = 131072
def g2_entry(L):
    a = Asm()
    a.label(f'g2l{L}_kernel')
    a('s_cmp_ge_u32 s2, 256')
    a('s_cbranch_scc1 g2_done')
    a('s_load_dwordx2 s[30:31], s[0:1], 64')
    a(f's_load_dwordx2 s[26:27], s[0:1], {16 if L % 2 == 0 else 40}')
    if L == 0:
        a('s_load_dwordx2 s[24:25], s[0:1], 0')
    if L == 3:
        a('s_load_dwordx2 s[22:23], s[0:1], 48')
    a('s_waitcnt lgkmcnt(0)')
    if L != 0:
        a(f's_add_u32 s24, s30, {X_OFF}')
        a('s_addc_u32 s25, s31, 0')
    if L != 3:
        a(f's_add_u32 s22, s30, {X_OFF}')
        a('s_addc_u32 s23, s31, 0')
    a(f's_mov_b32 s28, {1 if L != 3 else 0}')
    a('s_branch g2_body')
    return a.lines

def g2_issue(a, c_s):
    a('s_mov_b32 m0, s50')
    for n in range(4):
        a('s_nop 0')
        a(f'buffer_load_dwordx4 v{10 + n}, s[8:11], s51 offen lds')
        if n < 3:
            a('s_add_u32 m0, m0, 1024')
    a('s_add_u32 s50, s50, 16384')
    a('s_add_u32 s51, s51, 262144')

def gen_G2():
    a = Asm()
    a.label('g2_body')
    srd(a, 4, 30, 4 << 20, O_OFF)
    srd(a, 8, 26, 1024 * 2048)
    srd(a, 12, 24, 4 << 20)
    srd(a, 16, 22, 4 << 20)
    srd(a, 20, 30, 256 << 10, ST_OFF)
    a('s_and_b32 s32, s2, 7')
    a('s_lshr_b32 s33, s2, 3')
    a('s_and_b32 s29, s32, 3')
    a('s_lshl_b32 s29, s29, 2')
    a('s_and_b32 s34, s33, 3')
    a('s_add_u32 s29, s29, s34')
    a('s_lshr_b32 s30, s32, 2')
    a('s_lshl_b32 s30, s30, 3')
    a('s_lshr_b32 s34, s33, 2')
    a('s_add_u32 s30, s30, s34')
    a('v_lshrrev_b32 v1, 6, v0')
    a('v_readfirstlane_b32 s32, v1')
    a('v_and_b32 v247, 63, v0')
    a('s_cmp_ge_u32 s32, 4')
    a('s_cbranch_scc1 g2_loader')
    ACC, WF, OR, RES, WA, VO = 0, 32, 64, 192, 208, 212
    a('v_and_b32 v246, 15, v247')
    a('v_lshrrev_b32 v245, 4, v247')
    a('s_lshl_b32 s33, s29, 7')
    a('s_lshl_b32 s34, s32, 5')
    a('s_add_u32 s33, s33, s34')
    a('v_add_u32 v1, s33, v246')
    a('v_lshlrev_b32 v2, 11, v1')
    a(f'v_lshl_add_u32 v{VO}, v245, 4, v2')
    a(f'v_add_u32 v{VO + 1}, {16 * 2048}, v{VO}')
    a('v_and_b32 v3, 1, v245')
    a('v_lshlrev_b32 v3, 5, v3')
    a('v_lshrrev_b32 v4, 1, v245')
    a('v_lshl_add_u32 v3, v4, 4, v3')
    a('v_add_u32 v3, v3, v2')
    a('s_lshl_b32 s34, s30, 7')
    a('v_add_u32 v214, s34, v3')
    a(f'v_add_u32 v215, {16 * 2048}, v214')
    for rb in range(2):
        for p in range(2):
            a(f'buffer_load_dwordx4 {vr(RES + (rb * 2 + p) * 4, 4)}, v{214 + rb}, s[12:15], 0 offen offset:{p * 64}')
    D = 16
    def oload(ks):
        for rb in range(2):
            a(f'buffer_load_dwordx4 {vr(OR + ((ks % D) * 2 + rb) * 4, 4)}, v{VO + rb}, s[4:7], 0 offen offset:{ks * 64}')
    for ks in range(D):
        oload(ks)
    a('v_lshrrev_b32 v3, 2, v246')
    a('v_and_b32 v4, 3, v246')
    a('v_lshrrev_b32 v5, 1, v3')
    a('v_and_b32 v6, 1, v245')
    a('v_lshl_or_b32 v5, v6, 1, v5')
    a('v_lshlrev_b32 v5, 1, v5')
    a('v_lshrrev_b32 v6, 1, v4')
    a('v_xor_b32 v6, v6, v5')
    a('v_lshlrev_b32 v6, 4, v6')
    a('v_and_b32 v7, 1, v4')
    a('v_lshl_add_u32 v6, v7, 3, v6')
    a('v_lshl_add_u32 v7, v245, 3, v3')
    a(f'v_lshl_add_u32 v{WA}, v7, 7, v6')
    for cb in range(1, 4):
        a(f'v_xor_b32 v{WA + cb}, {cb * 32}, v{WA}')
    for r in range(32):
        a(f'v_mov_b32 v{r}, 0')
    def wreads(ks):
        out = []
        for cb in range(4):
            for u in range(2):
                out.append(f'ds_read_b64_tr_b16 {vr(WF + (ks & 1) * 16 + cb * 4 + 2 * u, 2)}, v{WA + cb} offset:{(ks % 16) * 4096 + u * 512}')
        return out
    a('s_barrier')
    for r in wreads(0):
        a(r)
    nissued = 4 + 2 * D
    for ks in range(32):
        outstanding_allowed = nissued - (4 + 2 * (ks + 1))
        a(f's_waitcnt vmcnt({outstanding_allowed}) lgkmcnt(0)')
        if ks % 4 == 3 and ks < 31:
            a('s_barrier')
        other = []
        if ks == 15:
            other += [f'v_add_u32 v{WA + cb}, 0x10000, v{WA + cb}' for cb in range(4)]
        if ks < 31:
            other += wreads(ks + 1)
        mf = []
        for rb in range(2):
            for cb in range(4):
                q = vr(ACC + (rb * 4 + cb) * 4, 4)
                mf.append(f'v_mfma_f32_16x16x32_bf16 {q}, {vr(WF + (ks & 1) * 16 + cb * 4, 4)}, {vr(OR + ((ks % D) * 2 + rb) * 4, 4)}, {q}')
        interleave(a, mf, other)
        if ks + D < 32:
            oload(ks + D)
            nissued += 2
    for rb in range(2):
        for p in range(2):
            for r in range(4):
                a(f'v_permlane16_swap_b32 v{ACC + (rb * 4 + 2 * p) * 4 + r}, v{ACC + (rb * 4 + 2 * p + 1) * 4 + r}')
    T = 40
    ST = 64
    for rb in range(2):
        for p in range(2):
            base = ACC + (rb * 4 + 2 * p) * 4
            rs = RES + (rb * 2 + p) * 4
            for d in range(4):
                a(f'v_lshlrev_b32 v{T}, 16, v{rs + d}')
                a(f'v_and_b32 v{T + 1}, 0xffff0000, v{rs + d}')
                a(f'v_pk_add_f32 {vr(base + 2 * d, 2)}, {vr(base + 2 * d, 2)}, {vr(T, 2)}')
            for d in range(4):
                a(f'v_cvt_pk_bf16_f32 v{rs + d}, v{base + 2 * d}, v{base + 2 * d + 1}')
            a(f'buffer_store_dwordx4 {vr(rs, 4)}, v{214 + rb}, s[16:19], 0 offen offset:{p * 64}')
    a('s_cmp_eq_u32 s28, 0')
    a('s_cbranch_scc1 g2_done')
    for rb in range(2):
        s2, q2 = ST + 4 * rb, ST + 4 * rb + 2
        base = ACC + rb * 16
        a(f'v_pk_add_f32 {vr(s2, 2)}, {vr(base, 2)}, {vr(base + 2, 2)}')
        a(f'v_pk_mul_f32 {vr(q2, 2)}, {vr(base, 2)}, {vr(base, 2)}')
        a(f'v_pk_fma_f32 {vr(q2, 2)}, {vr(base + 2, 2)}, {vr(base + 2, 2)}, {vr(q2, 2)}')
        for d in range(2, 8):
            pr = vr(base + 2 * d, 2)
            a(f'v_pk_add_f32 {vr(s2, 2)}, {vr(s2, 2)}, {pr}')
            a(f'v_pk_fma_f32 {vr(q2, 2)}, {pr}, {pr}, {vr(q2, 2)}')
        a(f'v_add_f32 v{s2}, v{s2}, v{s2 + 1}')
        a(f'v_add_f32 v{s2 + 1}, v{q2}, v{q2 + 1}')
    vals = [ST, ST + 1, ST + 4, ST + 5]
    for swap in ('v_permlane32_swap_b32', 'v_permlane16_swap_b32'):
        for n, v in enumerate(vals):
            a(f'v_mov_b32 v{T + n}, v{v}')
        for n, v in enumerate(vals):
            a(f'{swap} v{v}, v{T + n}')
        for n, v in enumerate(vals):
            a(f'v_add_f32 v{v}, v{v}, v{T + n}')
    a('v_add_u32 v1, s33, v246')
    a('v_lshlrev_b32 v1, 3, v1')
    a('s_lshl_b32 s34, s30, 14')
    a('v_cmp_gt_u32 vcc, 16, v247')
    a('s_and_saveexec_b64 s[44:45], vcc')
    a('s_cbranch_execz g2_done')
    a(f'buffer_store_dwordx2 {vr(ST, 2)}, v1, s[20:23], s34 offen')
    a(f'buffer_store_dwordx2 {vr(ST + 4, 2)}, v1, s[20:23], s34 offen offset:128')
    a('s_endpgm')
    a.label('g2_loader')
    a('s_sub_u32 s32, s32, 4')
    a('v_lshrrev_b32 v1, 3, v247')
    a('v_and_b32 v2, 7, v247')
    a('v_lshrrev_b32 v7, 1, v1')
    a('v_and_b32 v7, 1, v7')
    a('s_lshl_b32 s33, s32, 5')
    a('s_lshl_b32 s34, s30, 7')
    for n in range(4):
        a(f'v_or_b32 v9, {(n & 1) << 1}, v7')
        a('v_lshlrev_b32 v9, 1, v9')
        a('v_xor_b32 v9, v9, v2')
        a('v_lshlrev_b32 v9, 4, v9')
        a(f'v_add_u32 v8, {8 * n}, v1')
        a('v_add_u32 v8, s33, v8')
        a('v_lshl_add_u32 v9, v8, 11, v9')
        a(f'v_add_u32 v{10 + n}, s34, v9')
    a('s_lshl_b32 s50, s32, 12')
    a('s_mov_b32 s51, 0')
    for c in range(3):
        g2_issue(a, c)
    for c in range(8):
        out = min(7, c + 2) - c
        a(f's_waitcnt vmcnt({4 * out})')
        a('s_barrier')
        if c + 3 <= 7:
            g2_issue(a, c + 3)
    a.label('g2_done')
    a('s_endpgm')
    return fix_hazards(a.lines)

def desc(name, vgpr=256, sgpr=96):
    return f'''.amdhsa_kernel {name}
  .amdhsa_next_free_vgpr {vgpr}
  .amdhsa_next_free_sgpr {sgpr}
  .amdhsa_accum_offset {vgpr}
  .amdhsa_group_segment_fixed_size 0
  .amdhsa_kernarg_size 72
  .amdhsa_user_sgpr_count 2
  .amdhsa_user_sgpr_kernarg_segment_ptr 1
  .amdhsa_system_sgpr_workgroup_id_x 1
.end_amdhsa_kernel
'''

def build(nlaunch=None):
    launches = [('p_kernel', 256, 256, 8192)]
    for L in range(4):
        launches.append((f'g1l{L}_kernel', 256, 512, G1_LDS))
        launches.append((f'g2l{L}_kernel', 256, 512, G2_LDS))
    out = [HEADER.rstrip()]
    for k, g, b, lds in launches:
        out.append(f'; @launch kernel={k} grid=({g},1,1) block=({b},1,1) lds={lds}')
    out.append('.amdgcn_target "amdgcn-amd-amdhsa--gfx950"')
    out.append('.text')
    def kern(name, lines):
        out.append(f'.globl {name}')
        out.append('.p2align 8')
        out.append(f'.type {name},@function')
        out.extend(lines)
    kern('p_kernel', gen_P())
    for L in range(4):
        kern(f'g1l{L}_kernel', g1_entry(L))
    out.append('.p2align 8')
    out.extend(gen_G1())
    for L in range(4):
        kern(f'g2l{L}_kernel', g2_entry(L))
    out.append('.p2align 8')
    out.extend(gen_G2())
    out.append('.section .rodata,"a"')
    names = ['p_kernel'] + [f'g{n}l{L}_kernel' for L in range(4) for n in (1, 2)]
    for n in names:
        out.append('.p2align 6')
        out.append(desc(n, 128 if n == 'p_kernel' else 256))
    return '\n'.join(out) + '\n'

if __name__ == '__main__':
    dst = sys.argv[1] if len(sys.argv) > 1 else f'cdna_kernels/{NAME}.s'
    open(dst, 'w').write(build())
    print('wrote', dst)
```

```python
import sys, os, re, struct
sys.path.insert(0, 'dev')
from asmlib import Asm, fix_hazards, vr, sr

NAME = 'interleave_layers__sliding_local_dilated__sliding_local_dilated__prompt'
MB = 1 << 20
X_OFF = 0
O_OFF = 16 * MB
ST_OFF = 32 * MB
CS_OFF = 33 * MB
FL_OFF = 34 * MB
PROF_OFF = 40 * MB
OOB = 0x40000000
PROF = int(os.environ.get('PROF', '0'))
SPIN_MAX = 1 << 16
E = os.environ.get

HEADER = '''; Kernarg layout for this problem (72 bytes, ptrs only, base s[0:1]):
'''

def srd(a, d, base, nbytes, off=0):
    if off:
        a(f's_add_u32 s{d}, s{base}, {off}')
        a(f's_addc_u32 s{d+1}, s{base+1}, 0')
    else:
        a(f's_mov_b32 s{d}, s{base}')
        a(f's_mov_b32 s{d+1}, s{base+1}')
    a(f's_mov_b32 s{d+2}, {nbytes}')
    a(f's_mov_b32 s{d+3}, 0x20000')

def interleave(a, mf, other, start=0, per=1):
    o = list(other)
    for n, m in enumerate(mf):
        a(m)
        if n >= start:
            for _ in range(per):
                if o: a(o.pop(0))
    for x in o:
        a(x)

class VM:
    def __init__(self): self.q = []
    def add(self, tag, n=1): self.q += [tag] * n
    def need(self, pred):
        last = -1
        for k, t in enumerate(self.q):
            if pred(t): last = k
        return len(self.q) - 1 - last
    def wait(self, a, pred, extra=''):
        n = self.need(pred)
        assert n <= 63
        a(f's_waitcnt vmcnt({n}){extra}')

def gen_P():
    a = Asm()
    a.label('p_kernel')
    a('s_cmp_ge_u32 s2, 256')
    a('s_cbranch_scc1 p_done')
    a('s_load_dwordx2 s[4:5], s[0:1], 0')
    a('s_load_dwordx2 s[6:7], s[0:1], 8')
    a('s_load_dwordx2 s[8:9], s[0:1], 32')
    a('s_load_dwordx2 s[10:11], s[0:1], 64')
    a('s_cmp_ge_u32 s2, 192')
    a('s_cbranch_scc1 p_stats')
    a('s_waitcnt lgkmcnt(0)')
    a('s_cmp_ge_u32 s2, 96')
    a('s_cselect_b32 s12, s8, s6')
    a('s_cselect_b32 s13, s9, s7')
    a('s_cselect_b32 s20, 1, 0')
    a('s_mov_b32 s14, %d' % (1024 * 6144))
    a('s_mov_b32 s15, 0x20000')
    srd(a, 16, 10, 4 * 2 * 3072 * 4, CS_OFF)
    a('s_mul_i32 s21, s20, 96')
    a('s_sub_u32 s21, s2, s21')
    a('s_lshr_b32 s22, s21, 2')
    a('s_and_b32 s23, s21, 3')
    a('v_and_b32 v1, 15, v0')
    a('v_lshrrev_b32 v2, 4, v0')
    a('s_mul_i32 s24, s23, %d' % (256 * 6144))
    a('s_lshl_b32 s25, s22, 8')
    a('s_add_u32 s24, s24, s25')
    a('s_mov_b32 s26, 6144')
    a('v_mul_lo_u32 v3, v2, s26')
    a('v_lshl_add_u32 v3, v1, 4, v3')
    for it in range(16):
        a(f'buffer_load_dwordx4 {vr(16 + 4 * it, 4)}, v3, s[12:15], s24 offen')
        if it < 15:
            a(f's_add_u32 s24, s24, {16 * 6144}')
    for e in range(8):
        a(f'v_mov_b32 v{4 + e}, 0')
    for it in range(16):
        a(f's_waitcnt vmcnt({15 - it})')
        for d in range(4):
            r = 16 + 4 * it + d
            a(f'v_lshlrev_b32 v12, 16, v{r}')
            a(f'v_and_b32 v13, 0xffff0000, v{r}')
            a(f'v_add_f32 v{4 + 2 * d}, v{4 + 2 * d}, v12')
            a(f'v_add_f32 v{5 + 2 * d}, v{5 + 2 * d}, v13')
    a('v_lshlrev_b32 v14, 9, v2')
    a('v_lshl_add_u32 v14, v1, 5, v14')
    a('ds_write_b128 v14, v[4:7]')
    a('ds_write_b128 v14, v[8:11] offset:16')
    a('s_waitcnt lgkmcnt(0)')
    a('s_barrier')
    a('v_cmp_gt_u32 vcc, 128, v0')
    a('s_and_saveexec_b64 s[28:29], vcc')
    a('s_cbranch_execz p_done')
    a('v_lshlrev_b32 v14, 2, v0')
    for r in range(16):
        a(f'ds_read_b32 v{16 + r}, v14 offset:{r * 512}')
    a('s_waitcnt lgkmcnt(0)')
    for r in range(1, 16):
        a(f'v_add_f32 v16, v16, v{16 + r}')
    a('s_lshl_b32 s24, s23, 1')
    a('s_add_u32 s24, s24, s20')
    a('s_mul_i32 s24, s24, 12288')
    a('s_lshl_b32 s25, s22, 9')
    a('s_add_u32 s24, s24, s25')
    a('buffer_store_dword v16, v14, s[16:19], s24 offen')
    a('s_endpgm')
    a.label('p_stats')
    a('s_waitcnt lgkmcnt(0)')
    srd(a, 12, 4, 4 << 20)
    srd(a, 16, 10, 256 << 10, ST_OFF)
    srd(a, 24, 10, 16384, FL_OFF)
    a('s_sub_u32 s20, s2, 192')
    a('v_cmp_gt_u32 vcc, 64, v0')
    a('s_and_saveexec_b64 s[28:29], vcc')
    a('s_lshl_b32 s21, s20, 8')
    a('v_lshlrev_b32 v7, 2, v0')
    a('v_mov_b32 v8, 0')
    a('buffer_store_dword v8, v7, s[24:27], s21 offen')
    a('s_mov_b64 exec, s[28:29]')
    a('s_lshl_b32 s20, s20, 5')
    a('v_lshrrev_b32 v1, 6, v0')
    a('v_and_b32 v2, 63, v0')
    a('v_lshl_add_u32 v3, v1, 3, s20')
    a('v_lshlrev_b32 v4, 11, v3')
    a('v_lshl_add_u32 v4, v2, 4, v4')
    for i in range(8):
        for hh in range(2):
            k = 2 * i + hh
            a(f's_mov_b32 s21, {i * 2048 + hh * 1024}')
            a(f'buffer_load_dwordx4 {vr(16 + 4 * k, 4)}, v4, s[12:15], s21 offen')
    a('v_lshrrev_b32 v5, 3, v2')
    a('v_lshlrev_b32 v5, 14, v5')
    a('v_lshl_add_u32 v5, v3, 3, v5')
    a('v_and_b32 v6, 7, v2')
    a('v_cmp_eq_u32 s[22:23], 0, v6')
    for k in range(16):
        a(f's_waitcnt vmcnt({15 - k})')
        sreg, qreg = 80 + 2 * k, 81 + 2 * k
        for d in range(4):
            r = 16 + 4 * k + d
            a(f'v_lshlrev_b32 v12, 16, v{r}')
            a(f'v_and_b32 v13, 0xffff0000, v{r}')
            if d == 0:
                a(f'v_add_f32 v{sreg}, v12, v13')
                a(f'v_mul_f32 v{qreg}, v12, v12')
            else:
                a(f'v_add_f32 v{sreg}, v{sreg}, v12')
                a(f'v_fmac_f32 v{qreg}, v12, v12')
                a(f'v_add_f32 v{sreg}, v{sreg}, v13')
            a(f'v_fmac_f32 v{qreg}, v13, v13')
    for mode in ('quad_perm:[1,0,3,2]', 'quad_perm:[2,3,0,1]', 'row_half_mirror'):
        for q in range(80, 112):
            a(f'v_add_f32_dpp v{q}, v{q}, v{q} {mode} row_mask:0xf bank_mask:0xf')
    a('s_mov_b64 exec, s[22:23]')
    for k in range(16):
        i, hh = k >> 1, k & 1
        a(f's_mov_b32 s21, {hh * 8 * 16384 + i * 8}')
        a(f'buffer_store_dwordx2 {vr(80 + 2 * k, 2)}, v5, s[16:19], s21 offen')
    a.label('p_done')
    a('s_endpgm')
    return fix_hazards(a.lines)

SLOT = 43008
BOFF = 18432
S2 = 24576
B2 = 16384
PT = 6 * S2
T_NM = PT
T_RS = PT + 576
T_CS = PT + 1152
T_CNT = PT + 1152 + 1536
PROF_LDS = PT + 3072
LDS_BYTES = PROF_LDS + 2048 if PROF else PT + 3072

SX, SW, SO, SSI, SWO, SD, SSO, SFL = 4, 8, 12, 16, 20, 24, 28, 32
P_WS, P_X, P_OUT, P_WA, P_WB, P_OA, P_OB = 36, 38, 40, 42, 44, 46, 48
S_L, S_I, S_J, S_I2, S_J2, S_W, S_H = 50, 51, 52, 53, 54, 55, 56

def mark(a, n):
    if not PROF: return
    a('s_memrealtime s[90:91]')
    a('s_waitcnt lgkmcnt(0)')
    a('v_mov_b32 v255, s90')
    a(f'ds_write_b32 v254, v255 offset:{4 * n}')
    a('s_waitcnt lgkmcnt(0)')

def prof_next_layer(a):
    if PROF: a('v_add_u32 v254, 64, v254')

def prof_dump(a):
    if not PROF: return
    a('s_waitcnt lgkmcnt(0)')
    a(f's_lshl_b32 s57, s{S_W}, 8')
    a(f'v_lshlrev_b32 v1, 2, v247')
    a(f'v_add_u32 v2, s57, v1')
    a(f'v_add_u32 v2, {PROF_LDS}, v2')
    a('ds_read_b32 v3, v2')
    a(f's_add_u32 s60, s{P_WS}, {PROF_OFF}')
    a(f's_addc_u32 s61, s{P_WS + 1}, 0')
    a('s_mov_b32 s62, 0x100000')
    a('s_mov_b32 s63, 0x20000')
    a('s_lshl_b32 s58, s2, 11')
    a('s_add_u32 s58, s58, s57')
    a('s_waitcnt lgkmcnt(0)')
    a('buffer_store_dword v3, v1, s[60:63], s58 offen')
    a('s_waitcnt vmcnt(0)')

def set_layer_srds(a):
    L = S_L
    a(f's_lshl_b32 s57, s{L}, 22')
    a(f's_add_u32 s58, s{P_WS}, s57')
    a(f's_addc_u32 s59, s{P_WS + 1}, 0')
    a(f's_cmp_eq_u32 s{L}, 0')
    a(f's_cselect_b32 s{SX}, s{P_X}, s58')
    a(f's_cselect_b32 s{SX + 1}, s{P_X + 1}, s59')
    a(f's_add_u32 s{SO}, s58, {O_OFF}')
    a(f's_addc_u32 s{SO + 1}, s59, 0')
    a(f's_add_u32 s58, s58, {4 * MB}')
    a(f's_addc_u32 s59, s59, 0')
    a(f's_cmp_eq_u32 s{L}, 3')
    a(f's_cselect_b32 s{SD}, s{P_OUT}, s58')
    a(f's_cselect_b32 s{SD + 1}, s{P_OUT + 1}, s59')
    a(f's_lshl_b32 s57, s{L}, 18')
    a(f's_add_u32 s57, s57, {ST_OFF}')
    a(f's_add_u32 s{SSI}, s{P_WS}, s57')
    a(f's_addc_u32 s{SSI + 1}, s{P_WS + 1}, 0')
    a(f's_add_u32 s{SSO}, s{SSI}, {256 << 10}')
    a(f's_addc_u32 s{SSO + 1}, s{SSI + 1}, 0')
    a(f's_bitcmp1_b32 s{L}, 0')
    a(f's_cselect_b32 s{SW}, s{P_WB}, s{P_WA}')
    a(f's_cselect_b32 s{SW + 1}, s{P_WB + 1}, s{P_WA + 1}')
    a(f's_cselect_b32 s{SWO}, s{P_OB}, s{P_OA}')
    a(f's_cselect_b32 s{SWO + 1}, s{P_OB + 1}, s{P_OA + 1}')

def const_srds(a):
    for d, n in ((SX, 4 * MB), (SW, 1024 * 6144), (SO, 4 * MB), (SSI, 256 << 10), (SWO, 2 * MB), (SD, 4 * MB), (SSO, 256 << 10)):
        a(f's_mov_b32 s{d + 2}, {n}')
        a(f's_mov_b32 s{d + 3}, 0x20000')
    srd(a, SFL, P_WS, 16384, FL_OFF)

def poll(a, tag, nl, voff, soff_s):
    a('s_mov_b32 exec_hi, 0')
    a(f's_mov_b32 exec_lo, {hex((1 << nl) - 1)}')
    a('s_mov_b32 s66, 0')
    a.label(f'poll_{tag}')
    a(f'buffer_load_dword v30, v{voff}, {sr(SFL, 4)}, s{soff_s} offen sc1')
    a('s_waitcnt vmcnt(0)')
    a('v_cmp_ne_u32 vcc, 0, v30')
    a(f's_cmp_eq_u32 vcc_lo, {hex((1 << nl) - 1)}')
    a(f's_cbranch_scc1 poll_{tag}_ok')
    a('s_add_u32 s66, s66, 1')
    a(f's_cmp_lt_u32 s66, {SPIN_MAX}')
    a(f's_cbranch_scc0 poll_{tag}_ok')
    a('s_sleep 1')
    a(f's_branch poll_{tag}')
    a.label(f'poll_{tag}_ok')
    a('s_mov_b64 exec, -1')

def signal(a, tag, ph, s_row, s_col):
    a('s_waitcnt vmcnt(0)')
    a(f'v_mov_b32 v236, {T_CNT + 4 * ph}')
    a('v_mov_b32 v237, 1')
    a('s_mov_b64 exec, 1')
    a('ds_add_rtn_u32 v238, v236, v237')
    a('s_waitcnt lgkmcnt(0)')
    a('v_readfirstlane_b32 s57, v238')
    a('s_and_b32 s57, s57, 3')
    a('s_cmp_eq_u32 s57, 3')
    a(f's_cbranch_scc0 sig_{tag}_skip')
    a(f's_lshl_b32 s57, s{S_L}, 1')
    a(f's_add_u32 s57, s57, {ph}')
    a('s_lshl_b32 s57, s57, 4')
    a(f's_add_u32 s57, s57, s{s_row}')
    a('s_lshl_b32 s57, s57, 7')
    a(f's_lshl_b32 s58, s{s_col}, 2')
    a('s_add_u32 s57, s57, s58')
    a('v_mov_b32 v236, 0')
    a(f'buffer_store_dword v237, v236, {sr(SFL, 4)}, s57 offen sc1')
    a.label(f'sig_{tag}_skip')
    a('s_mov_b64 exec, -1')

QA, KA, VA, HA = 0, 32, 64, 96
F = [dict(x=104, w=124), dict(x=148, w=168)]
XA0, XA1, WA0, WA1 = 192, 193, 194, 195

def g1_reads(fs, hf, kk):
    xa = XA0 if kk == 0 else XA1
    xb, wb = F[fs]['x'], F[fs]['w']
    xs = [f'ds_read_b128 {vr(xb + 4 * b, 4)}, v{xa} offset:{(0 if b == 0 else (4 * hf + b)) * 2048}' for b in range(5)]
    ws = []
    for seg in range(3):
        for db in range(2):
            for u in range(2):
                r = wb + (seg * 2 + db) * 4 + 2 * u
                ws.append(f'ds_read_b64_tr_b16 {vr(r, 2)}, v{WA0 + db} offset:{seg * 8192 + kk * 4096 + u * 512}')
    return ws[0:4] + [xs[1]] + ws[4:8] + [xs[2]] + ws[8:12] + [xs[3], xs[4], xs[0]]

def g1_mfmas(fs, hf):
    out = []
    xb, wb = F[fs]['x'], F[fs]['w']
    X = lambda b: vr(xb + 4 * b, 4)
    W = lambda seg, db: vr(wb + (seg * 2 + db) * 4, 4)
    for b in range(1, 5):
        for db in range(2):
            q = vr(QA + ((b - 1) * 2 + db) * 4, 4)
            out.append(f'v_mfma_f32_16x16x32_bf16 {q}, {W(0, db)}, {X(b)}, {q}')
        for db in range(2):
            q = vr(KA + ((b - 1) * 2 + db) * 4, 4)
            out.append(f'v_mfma_f32_16x16x32_bf16 {q}, {W(1, db)}, {X(b)}, {q}')
        for db in range(2):
            q = vr(VA + ((b - 1) * 2 + db) * 4, 4)
            out.append(f'v_mfma_f32_16x16x32_bf16 {q}, {X(b)}, {W(2, db)}, {q}')
    for db in range(2):
        q = vr(HA + db * 4, 4)
        if hf == 0:
            out.append(f'v_mfma_f32_16x16x32_bf16 {q}, {W(1, db)}, {X(0)}, {q}')
        else:
            out.append(f'v_mfma_f32_16x16x32_bf16 {q}, {X(0)}, {W(2, db)}, {q}')
    return out

def g1_compute(hf):
    a = Asm()
    L = f'g1c{hf}'
    a.label(L)
    mark(a, 1)
    a('s_barrier')
    mark(a, 2)
    for r in g1_reads(0, hf, 0):
        a(r)
    a('s_mov_b32 s70, 0')
    a('s_mov_b32 s71, 0')
    a(f's_mov_b32 s72, {-2 * SLOT & 0xffffffff}')
    a(f's_mov_b32 s73, {SLOT}')
    a.label(L + '_loop')
    a('s_waitcnt lgkmcnt(0)')
    a('s_cmp_eq_u32 s71, 2')
    a('s_cselect_b32 s74, s72, s73')
    a('s_cselect_b32 s71, -1, s71')
    a('s_add_u32 s71, s71, 1')
    rd = g1_reads(1, hf, 1)
    adv = [f'v_add_u32 v{r}, s74, v{r}' for r in (XA0, XA1, WA0, WA1)]
    interleave(a, g1_mfmas(0, hf), rd + adv)
    a('s_waitcnt lgkmcnt(0)')
    a('s_barrier')
    a('s_cmp_eq_u32 s70, 15')
    a(f's_cbranch_scc1 {L}_last')
    interleave(a, g1_mfmas(1, hf), g1_reads(0, hf, 0))
    a('s_add_u32 s70, s70, 1')
    a(f's_branch {L}_loop')
    a.label(L + '_last')
    mark(a, 3)
    T_NM1, T_RS1 = 104, 109
    T_CQ, T_CK = 114, 122
    T_CV = 130
    T_NM4, T_RS4 = 196, 216
    a('v_and_b32 v246, 15, v247')
    a('v_lshrrev_b32 v245, 4, v247')
    a('v_lshlrev_b32 v244, 2, v246')
    a('v_lshlrev_b32 v243, 4, v245')
    a(f's_lshl_b32 s57, s{S_H}, 7')
    a(f's_and_b32 s58, s{S_L}, 1')
    a('s_mul_i32 s58, s58, 768')
    a('s_add_u32 s57, s57, s58')
    a(f's_add_u32 s57, s57, {T_CS}')
    a('v_add_u32 v242, s57, v243')
    a('v_add_u32 v241, s57, v244')
    a(f'v_add_u32 v244, {T_NM}, v244')
    a(f'v_add_u32 v243, {T_NM}, v243')
    rds = []
    for b in range(5):
        rb = 0 if b == 0 else 4 * hf + b
        if b > 0 or hf == 0:
            rds.append(f'ds_read_b32 v{T_NM1 + b}, v244 offset:{rb * 64}')
            rds.append(f'ds_read_b32 v{T_RS1 + b}, v244 offset:{576 + rb * 64}')
        if b > 0 or hf == 1:
            rds.append(f'ds_read_b128 {vr(T_NM4 + 4 * b, 4)}, v243 offset:{rb * 64}')
            rds.append(f'ds_read_b128 {vr(T_RS4 + 4 * b, 4)}, v243 offset:{576 + rb * 64}')
    for db in range(2):
        rds.append(f'ds_read_b128 {vr(T_CQ + 4 * db, 4)}, v242 offset:{db * 64}')
        rds.append(f'ds_read_b128 {vr(T_CK + 4 * db, 4)}, v242 offset:{256 + db * 64}')
        rds.append(f'ds_read_b32 v{T_CV + db}, v241 offset:{512 + db * 64}')
    interleave(a, g1_mfmas(1, hf), rds)
    a('s_waitcnt lgkmcnt(0)')
    QF, KF = 132, 148
    VF = [168, 178]
    CL = 188
    SC = 0.17677669529663687 * 1.4426950408889634
    scbits = struct.unpack('<I', struct.pack('<f', SC))[0]
    a(f's_mov_b32 s75, {scbits}')
    def conv1(acc, dst, cs, nm, rs):
        for db in range(2):
            for hh in range(2):
                p = vr(acc + db * 4 + 2 * hh, 2)
                a(f'v_pk_fma_f32 {p}, {vr(cs + db * 4 + 2 * hh, 2)}, {vr(nm & ~1, 2)}, {p} op_sel:[0,{nm & 1},0] op_sel_hi:[1,{nm & 1},1]')
                if rs is not None:
                    a(f'v_pk_mul_f32 {p}, {p}, {vr(rs & ~1, 2)} op_sel:[0,{rs & 1}] op_sel_hi:[1,{rs & 1}]')
        for db in range(2):
            for hh in range(2):
                a(f'v_cvt_pk_bf16_f32 v{dst + db * 2 + hh}, v{acc + db * 4 + 2 * hh}, v{acc + db * 4 + 2 * hh + 1}')
    def conv2(acc, b):
        for db in range(2):
            cv = T_CV + db
            for hh in range(2):
                p = vr(acc + db * 4 + 2 * hh, 2)
                a(f'v_pk_fma_f32 {p}, {vr(T_NM4 + 4 * b + 2 * hh, 2)}, {vr(cv & ~1, 2)}, {p} op_sel:[0,{cv & 1},0] op_sel_hi:[1,{cv & 1},1]')
                a(f'v_pk_mul_f32 {p}, {p}, {vr(T_RS4 + 4 * b + 2 * hh, 2)}')
        for db in range(2):
            for hh in range(2):
                a(f'v_cvt_pk_bf16_f32 v{VF[db] + 2 * b + hh}, v{acc + db * 4 + 2 * hh}, v{acc + db * 4 + 2 * hh + 1}')
    a(f's_lshl_b32 s57, s{S_H}, 12')
    a('v_lshlrev_b32 v240, 4, v247')
    a('v_add_u32 v240, s57, v240')
    a('v_lshlrev_b32 v239, 3, v247')
    a('v_add_u32 v239, s57, v239')
    if hf == 0:
        conv1(KA + 3 * 8, KF + 16, T_CK, T_NM1 + 4, T_RS1 + 4)
        conv2(VA + 3 * 8, 4)
        a(f'ds_write_b128 v240, {vr(KF + 16, 4)}')
        a(f'ds_write_b64 v239, {vr(VF[0] + 8, 2)} offset:1024')
        a(f'ds_write_b64 v239, {vr(VF[1] + 8, 2)} offset:1536')
        conv1(HA, KF, T_CK, T_NM1, T_RS1)
        rest_k, rest_v = (1, 2, 3), (1, 2, 3)
    else:
        conv2(HA, 0)
        a(f'ds_write_b64 v239, {vr(VF[0], 2)} offset:2048')
        a(f'ds_write_b64 v239, {vr(VF[1], 2)} offset:2560')
        rest_k, rest_v = (1, 2, 3, 4), (1, 2, 3, 4)
    a('s_waitcnt lgkmcnt(0)')
    mark(a, 4)
    a('s_barrier')
    if hf == 0:
        a(f'ds_read_b64 {vr(VF[0], 2)}, v239 offset:2048')
        a(f'ds_read_b64 {vr(VF[1], 2)}, v239 offset:2560')
    else:
        a(f'ds_read_b128 {vr(KF, 4)}, v240')
        a(f'ds_read_b64 {vr(VF[0], 2)}, v239 offset:1024')
        a(f'ds_read_b64 {vr(VF[1], 2)}, v239 offset:1536')
    for b in range(1, 5):
        conv1(QA + (b - 1) * 8, QF + (b - 1) * 4, T_CQ, T_NM1 + b, None)
        a(f'v_mul_f32 v{CL + b - 1}, s75, v{T_RS1 + b}')
    for b in rest_k:
        conv1(KA + (b - 1) * 8, KF + 4 * b, T_CK, T_NM1 + b, T_RS1 + b)
    for b in rest_v:
        conv2(VA + (b - 1) * 8, b)
    BP, BC, BP1 = 0, 4, 8
    ONES = 12
    a('s_mov_b32 s76, 0xff800000')
    for r in range(4):
        a(f'v_lshl_add_u32 v100, v245, 2, {r}')
        a('v_sub_u32 v100, v100, v246')
        a('v_and_b32 v101, 1, v100')
        a('v_cmp_eq_u32 s[60:61], 0, v101')
        a('v_cmp_le_i32 s[62:63], 2, v100')
        a('v_cmp_ge_i32 s[64:65], 0, v100')
        a('s_and_b64 s[62:63], s[62:63], s[60:61]')
        a('s_and_b64 s[64:65], s[64:65], s[60:61]')
        a(f'v_mov_b32 v102, s76')
        a(f'v_cndmask_b32 v{BP + r}, v102, 0, s[62:63]')
        a(f'v_cndmask_b32 v{BC + r}, v102, 0, s[64:65]')
        if hf == 0:
            a(f's_cmp_eq_u32 s{S_I}, 0')
            a('s_cselect_b64 s[62:63], 0, s[62:63]')
        a(f'v_cndmask_b32 v{BP1 + r}, v102, 0, s[62:63]')
        a(f'v_mov_b32 v{ONES + r}, 0x3f803f80')
    a('v_and_b32 v100, 1, v245')
    a('v_lshlrev_b32 v100, 5, v100')
    a('v_lshrrev_b32 v101, 1, v245')
    a('v_lshl_add_u32 v100, v101, 4, v100')
    a('v_lshl_add_u32 v100, v246, 11, v100')
    a(f's_lshl_b32 s57, s{S_I}, 18')
    a(f's_add_u32 s57, s57, {hf * 64 * 2048}')
    a(f's_lshl_b32 s58, s{S_J}, 7')
    a('s_add_u32 s57, s57, s58')
    a(f's_lshl_b32 s58, s{S_H}, 6')
    a('s_add_u32 s57, s57, s58')
    a('v_add_u32 v100, s57, v100')
    OADDR = 100
    a('s_waitcnt lgkmcnt(0)')
    base = lambda b: 16 + (b - 1) * 20
    SPr = lambda b: base(b)
    SCu = lambda b: base(b) + 4
    PP = lambda b: base(b) + 8
    MX = lambda b: base(b) + 12
    MT = lambda b: base(b) + 13
    SUM = lambda b: 196 + (b - 1) * 12
    O0 = lambda b: 196 + (b - 1) * 12 + 4
    O1 = lambda b: 196 + (b - 1) * 12 + 8
    for b in range(1, 5):
        q = vr(QF + (b - 1) * 4, 4)
        a(f'v_mfma_f32_16x16x32_bf16 {vr(SPr(b), 4)}, {vr(KF + 4 * (b - 1), 4)}, {q}, 0')
        a(f'v_mfma_f32_16x16x32_bf16 {vr(SCu(b), 4)}, {vr(KF + 4 * b, 4)}, {q}, 0')
    for b in range(1, 5):
        for r in range(4):
            bp = (BP1 if b == 1 else BP) + r
            a(f'v_fma_f32 v{SPr(b) + r}, v{SPr(b) + r}, v{CL + b - 1}, v{bp}')
            a(f'v_fma_f32 v{SCu(b) + r}, v{SCu(b) + r}, v{CL + b - 1}, v{BC + r}')
    for b in range(1, 5):
        s, c = SPr(b), SCu(b)
        a(f'v_max3_f32 v{MX(b)}, v{s}, v{s + 1}, v{s + 2}')
        a(f'v_max3_f32 v{MT(b)}, v{s + 3}, v{c}, v{c + 1}')
        a(f'v_max3_f32 v{MX(b)}, v{MX(b)}, v{c + 2}, v{c + 3}')
        a(f'v_max_f32 v{MX(b)}, v{MX(b)}, v{MT(b)}')
    for swap in ('v_permlane32_swap_b32', 'v_permlane16_swap_b32'):
        for b in range(1, 5):
            a(f'v_mov_b32 v{MT(b)}, v{MX(b)}')
        for b in range(1, 5):
            a(f'{swap} v{MX(b)}, v{MT(b)}')
        for b in range(1, 5):
            a(f'v_max_f32 v{MX(b)}, v{MX(b)}, v{MT(b)}')
    for b in range(1, 5):
        for r in range(8):
            a(f'v_sub_f32 v{SPr(b) + r}, v{SPr(b) + r}, v{MX(b)}')
    for b in range(1, 5):
        for r in range(8):
            a(f'v_exp_f32 v{SPr(b) + r}, v{SPr(b) + r}')
    for b in range(1, 5):
        for r in range(4):
            a(f'v_cvt_pk_bf16_f32 v{PP(b) + r}, v{SPr(b) + 2 * r}, v{SPr(b) + 2 * r + 1}')
    for b in range(1, 5):
        p = vr(PP(b), 4)
        a(f'v_mfma_f32_16x16x32_bf16 {vr(SUM(b), 4)}, {vr(ONES, 4)}, {p}, 0')
        a(f'v_mfma_f32_16x16x32_bf16 {vr(O0(b), 4)}, {vr(VF[0] + 2 * (b - 1), 4)}, {p}, 0')
        a(f'v_mfma_f32_16x16x32_bf16 {vr(O1(b), 4)}, {vr(VF[1] + 2 * (b - 1), 4)}, {p}, 0')
    for b in range(1, 5):
        a(f'v_rcp_f32 v{SUM(b)}, v{SUM(b)}')
    for b in range(1, 5):
        for o in (O0(b), O1(b)):
            for hh in range(2):
                s = SUM(b)
                a(f'v_pk_mul_f32 {vr(o + 2 * hh, 2)}, {vr(o + 2 * hh, 2)}, {vr(s & ~1, 2)} op_sel:[0,{s & 1}] op_sel_hi:[1,{s & 1}]')
    for b in range(1, 5):
        a(f'v_cvt_pk_bf16_f32 v{PP(b)}, v{O0(b)}, v{O0(b) + 1}')
        a(f'v_cvt_pk_bf16_f32 v{PP(b) + 1}, v{O0(b) + 2}, v{O0(b) + 3}')
        a(f'v_cvt_pk_bf16_f32 v{PP(b) + 2}, v{O1(b)}, v{O1(b) + 1}')
        a(f'v_cvt_pk_bf16_f32 v{PP(b) + 3}, v{O1(b) + 2}, v{O1(b) + 3}')
    for b in range(1, 5):
        a(f'v_permlane16_swap_b32 v{PP(b)}, v{PP(b) + 2}')
        a(f'v_permlane16_swap_b32 v{PP(b) + 1}, v{PP(b) + 3}')
    for b in range(1, 5):
        a(f's_mov_b32 s57, {(b - 1) * 16 * 2048}')
        a(f'buffer_store_dwordx4 {vr(PP(b), 4)}, v{OADDR}, {sr(SO, 4)}, s57 offen sc1')
    mark(a, 5)
    a('s_branch c_g2')
    return a

ACC2 = 0
FR = [32, 56, 80]
RES = 104
XB = [120, 122, 124]
WB = [126, 130, 134]
RA = 138
VA2 = 248

def g2_reads(s):
    st, kk = s >> 1, s & 1
    slot = st % 6
    p, o = slot >> 1, (slot & 1) * S2
    f = FR[s % 3]
    xs = [f'ds_read_b128 {vr(f + 4 * rb, 4)}, v{XB[p] + kk} offset:{o + rb * 2048}' for rb in range(2)]
    ws = []
    for cb in range(4):
        for u in range(2):
            ws.append(f'ds_read_b64_tr_b16 {vr(f + 8 + cb * 4 + 2 * u, 2)}, v{WB[p] + cb} offset:{o + kk * 4096 + u * 512}')
    return [xs[0]] + ws[0:4] + [xs[1]] + ws[4:8]

def g2_mfmas(s):
    f = FR[s % 3]
    out = []
    for cb in range(4):
        for rb in range(2):
            q = vr(ACC2 + (rb * 4 + cb) * 4, 4)
            out.append(f'v_mfma_f32_16x16x32_bf16 {q}, {vr(f + 8 + cb * 4, 4)}, {vr(f + 4 * rb, 4)}, {q}')
    return out

def g2_burst(a, vm, v0, s_base):
    for st in range(6):
        a(f's_add_u32 m0, s{s_base}, {st * S2}')
        a(f's_mov_b32 s57, {st * 128}')
        a(f'buffer_load_dwordx4 v{v0}, {sr(SO, 4)}, s57 offen lds')
        a('s_add_u32 m0, m0, 1024')
        a(f'buffer_load_dwordx4 v{v0 + 1}, {sr(SO, 4)}, s57 offen lds')
        vm.add(('A', st), 2)

def g2_compute(a):
    a.label('c_g2')
    vm = VM()
    a('v_and_b32 v246, 15, v247')
    a('v_lshrrev_b32 v245, 4, v247')
    a(f's_lshl_b32 s77, s{S_I2}, 7')
    a(f's_lshl_b32 s57, s{S_W}, 5')
    a('s_add_u32 s77, s77, s57')
    a('v_add_u32 v1, s77, v246')
    a('v_lshlrev_b32 v2, 11, v1')
    a('v_and_b32 v3, 1, v245')
    a('v_lshlrev_b32 v3, 5, v3')
    a('v_lshrrev_b32 v4, 1, v245')
    a('v_lshl_add_u32 v3, v4, 4, v3')
    a('v_add_u32 v3, v3, v2')
    a(f's_lshl_b32 s57, s{S_J2}, 7')
    a(f'v_add_u32 v{RA}, s57, v3')
    a(f'v_add_u32 v{RA + 1}, {16 * 2048}, v{RA}')
    vm.add('st', 4)
    for rb in range(2):
        for p in range(2):
            a(f'buffer_load_dwordx4 {vr(RES + (rb * 2 + p) * 4, 4)}, v{RA + rb}, {sr(SX, 4)}, 0 offen offset:{p * 64}')
            vm.add('res')
    n = vm.need(lambda t: t == 'st')
    a(f's_waitcnt vmcnt({n})')
    sig = Asm()
    signal(sig, 'o', 0, S_I, S_J)
    a.extend(sig.lines[1:])
    mark(a, 6)
    a('v_lshrrev_b32 v3, 1, v246')
    a('v_xor_b32 v4, v245, v3')
    a('v_lshlrev_b32 v4, 4, v4')
    a(f's_lshl_b32 s57, s{S_W}, 12')
    a('v_lshl_add_u32 v4, v246, 7, v4')
    a(f'v_add_u32 v{XB[0]}, s57, v4')
    a(f'v_xor_b32 v{XB[0] + 1}, 64, v{XB[0]}')
    a('v_lshrrev_b32 v3, 2, v246')
    a('v_and_b32 v4, 3, v246')
    a('v_lshrrev_b32 v5, 1, v3')
    a('v_and_b32 v6, 1, v245')
    a('v_lshl_or_b32 v5, v6, 1, v5')
    a('v_lshlrev_b32 v5, 1, v5')
    a('v_lshrrev_b32 v6, 1, v4')
    a('v_xor_b32 v6, v6, v5')
    a('v_lshlrev_b32 v6, 4, v6')
    a('v_and_b32 v7, 1, v4')
    a('v_lshl_add_u32 v6, v7, 3, v6')
    a('v_lshl_add_u32 v7, v245, 3, v3')
    a('v_lshl_add_u32 v6, v7, 7, v6')
    a(f'v_add_u32 v{WB[0]}, {B2}, v6')
    for cb in range(1, 4):
        a(f'v_xor_b32 v{WB[0] + cb}, {cb * 32}, v{WB[0]}')
    for p in range(1, 3):
        for k in range(2):
            a(f'v_add_u32 v{XB[p] + k}, {p * 2 * S2}, v{XB[0] + k}')
        for cb in range(4):
            a(f'v_add_u32 v{WB[p] + cb}, {p * 2 * S2}, v{WB[0] + cb}')
    for r in range(32):
        a(f'v_mov_b32 v{ACC2 + r}, 0')
    a(f's_lshl_b32 s78, s{S_W}, 12')
    a('s_add_u32 s78, s78, 2048')
    a('s_barrier')
    mark(a, 7)
    g2_burst(a, vm, VA2, 78)
    vm.wait(a, lambda t: t == ('A', 0) or t == 'res')
    a('s_barrier')
    mark(a, 8)
    for r in g2_reads(0) + g2_reads(1):
        a(r)
    for s in range(32):
        u = s >> 1
        if s % 2 == 0 and u <= 14:
            if u + 1 <= 5:
                vm.wait(a, lambda t: t == ('A', u + 1))
            a('s_barrier')
        a(f's_waitcnt lgkmcnt({10 if s < 31 else 0})')
        if s == 31:
            a('s_barrier')
        interleave(a, g2_mfmas(s), g2_reads(s + 2) if s + 2 < 32 else [], per=2)
    mark(a, 9)
    for rb in range(2):
        for p in range(2):
            for r in range(4):
                a(f'v_permlane16_swap_b32 v{ACC2 + (rb * 4 + 2 * p) * 4 + r}, v{ACC2 + (rb * 4 + 2 * p + 1) * 4 + r}')
    T = 32
    ST = 80
    for rb in range(2):
        for p in range(2):
            base = ACC2 + (rb * 4 + 2 * p) * 4
            rs = RES + (rb * 2 + p) * 4
            for d in range(4):
                t = T + 2 * (d & 1)
                a(f'v_lshlrev_b32 v{t}, 16, v{rs + d}')
                a(f'v_and_b32 v{t + 1}, 0xffff0000, v{rs + d}')
                a(f'v_pk_add_f32 {vr(base + 2 * d, 2)}, {vr(base + 2 * d, 2)}, {vr(t, 2)}')
            for d in range(4):
                a(f'v_cvt_pk_bf16_f32 v{rs + d}, v{base + 2 * d}, v{base + 2 * d + 1}')
            a(f'buffer_store_dwordx4 {vr(rs, 4)}, v{RA + rb}, {sr(SD, 4)}, 0 offen offset:{p * 64} sc1')
    a(f's_cmp_eq_u32 s{S_L}, 3')
    a('s_cbranch_scc1 c_done')
    for rb in range(2):
        s2, q2 = ST + 4 * rb, ST + 4 * rb + 2
        base = ACC2 + rb * 16
        a(f'v_pk_add_f32 {vr(s2, 2)}, {vr(base, 2)}, {vr(base + 2, 2)}')
        a(f'v_pk_mul_f32 {vr(q2, 2)}, {vr(base, 2)}, {vr(base, 2)}')
        a(f'v_pk_fma_f32 {vr(q2, 2)}, {vr(base + 2, 2)}, {vr(base + 2, 2)}, {vr(q2, 2)}')
        for d in range(2, 8):
            pr = vr(base + 2 * d, 2)
            a(f'v_pk_add_f32 {vr(s2, 2)}, {vr(s2, 2)}, {pr}')
            a(f'v_pk_fma_f32 {vr(q2, 2)}, {pr}, {pr}, {vr(q2, 2)}')
        a(f'v_add_f32 v{s2}, v{s2}, v{s2 + 1}')
        a(f'v_add_f32 v{s2 + 1}, v{q2}, v{q2 + 1}')
    vals = [ST, ST + 1, ST + 4, ST + 5]
    for swap in ('v_permlane32_swap_b32', 'v_permlane16_swap_b32'):
        for n, v in enumerate(vals):
            a(f'v_mov_b32 v{T + n}, v{v}')
        for n, v in enumerate(vals):
            a(f'{swap} v{v}, v{T + n}')
        for n, v in enumerate(vals):
            a(f'v_add_f32 v{v}, v{v}, v{T + n}')
    a('v_add_u32 v40, s77, v246')
    a('v_lshlrev_b32 v40, 3, v40')
    a(f's_lshl_b32 s57, s{S_J2}, 14')
    a('s_mov_b32 exec_hi, 0')
    a('s_mov_b32 exec_lo, 0xffff')
    a(f'buffer_store_dwordx2 {vr(ST, 2)}, v40, {sr(SSO, 4)}, s57 offen sc1')
    a(f'buffer_store_dwordx2 {vr(ST + 4, 2)}, v40, {sr(SSO, 4)}, s57 offen offset:128 sc1')
    a('s_mov_b64 exec, -1')
    signal(a, 'x', 1, S_I2, S_J2)
    mark(a, 10)

LA, LX, LB = 10, 14, 15
LA2, LB2 = 21, 25
def g1_issue_A(a, vm, st, slot_expr, kA):
    def m0set(sreg):
        if slot_expr[0] == 'imm': a(f's_add_u32 m0, s{sreg}, {slot_expr[1]}')
        else: a(f's_add_u32 m0, s{slot_expr[1]}, s{sreg}')
    m0set(70)
    for n in range(4):
        a(f'buffer_load_dwordx4 v{LA + n}, {sr(SX, 4)}, s{kA} offen lds')
        if n < 3: a('s_add_u32 m0, m0, 1024')
    m0set(71)
    a('s_mov_b32 exec_hi, 0')
    a(f'buffer_load_dwordx4 v{LX}, {sr(SX, 4)}, s{kA} offen lds')
    a('s_mov_b32 exec_hi, -1')
    vm.add(('A', st), 5)
def g1_issue_B(a, vm, st, slot_expr, kB):
    if slot_expr[0] == 'imm': a(f's_add_u32 m0, s72, {slot_expr[1]}')
    else: a(f's_add_u32 m0, s{slot_expr[1]}, s72')
    for n in range(6):
        a(f'buffer_load_dwordx4 v{LB + n}, {sr(SW, 4)}, s{kB} offen lds')
        if n < 5: a('s_add_u32 m0, m0, 1024')
    vm.add(('B', st), 6)

def g1_prefetch_B(a, vm):
    for st in range(3):
        a(f's_mov_b32 s58, {st * 64 * 6144}')
        g1_issue_B(a, vm, st, ('imm', st * SLOT), 58)

def loader(a):
    a.label('loader')
    lw = S_H
    a(f's_sub_u32 s{lw}, s{S_W}, 4')
    a(f's_lshl_b32 s70, s{lw}, 12')
    a(f's_lshl_b32 s71, s{lw}, 9')
    a('s_add_u32 s71, s71, 16384')
    a(f's_mul_i32 s72, s{lw}, 6144')
    a(f's_add_u32 s72, s72, {BOFF}')
    a(f's_lshl_b32 s73, s{lw}, 11')
    a(f's_add_u32 s73, s73, {B2}')
    a('v_lshrrev_b32 v1, 3, v247')
    a('v_and_b32 v2, 7, v247')
    a(f'v_mov_b32 v5, {OOB}')
    a(f's_lshl_b32 s64, s{S_I}, 7')
    a('s_sub_u32 s64, s64, 16')
    a('v_lshrrev_b32 v7, 1, v1')
    a(f's_lshl_b32 s65, s{lw}, 5')
    a('s_add_u32 s65, s65, s64')
    for n in range(4):
        a(f'v_add_u32 v8, {8 * n}, v1')
        a('v_add_u32 v8, s65, v8')
        a(f'v_xor_b32 v9, {4 * (n & 1)}, v7')
        a('v_xor_b32 v9, v9, v2')
        a('v_lshlrev_b32 v9, 4, v9')
        a('v_lshl_add_u32 v9, v8, 11, v9')
        a('v_cmp_gt_i32 vcc, 0, v8')
        a(f'v_cndmask_b32 v{LA + n}, v9, v5, vcc')
    a(f's_lshl_b32 s65, s{lw}, 2')
    a('s_add_u32 s65, s65, s64')
    a('s_add_u32 s65, s65, 128')
    a('v_add_u32 v8, s65, v1')
    a(f's_lshl_b32 s65, s{lw}, 1')
    a('v_add_u32 v9, s65, v7')
    a('v_and_b32 v9, 7, v9')
    a('v_xor_b32 v9, v9, v2')
    a('v_lshlrev_b32 v9, 4, v9')
    a(f'v_lshl_add_u32 v{LX}, v8, 11, v9')
    a(f's_lshl_b32 s65, s{S_I2}, 7')
    a(f's_lshl_b32 s66, s{lw}, 5')
    a('s_add_u32 s65, s65, s66')
    for n in range(4):
        a(f'v_add_u32 v8, {8 * n}, v1')
        a('v_add_u32 v8, s65, v8')
        a(f'v_xor_b32 v9, {4 * (n & 1)}, v7')
        a('v_xor_b32 v9, v9, v2')
        a('v_lshlrev_b32 v9, 4, v9')
        a(f'v_lshl_add_u32 v{LA2 + n}, v8, 11, v9')
    a('v_and_b32 v7, 1, v7')
    for n in range(2):
        a(f'v_or_b32 v9, {n << 1}, v7')
        a('v_lshlrev_b32 v9, 1, v9')
        a('v_xor_b32 v9, v9, v2')
        a('v_lshlrev_b32 v9, 4, v9')
        a(f's_lshl_b32 s65, s{lw}, 4')
        a(f's_add_u32 s65, s65, {8 * n}')
        a('v_add_u32 v8, s65, v1')
        a('v_lshl_add_u32 v9, v8, 11, v9')
        a(f's_lshl_b32 s65, s{S_J2}, 7')
        a(f'v_add_u32 v{LB2 + n}, s65, v9')
    a('s_mov_b32 s65, 6144')
    a('v_mul_lo_u32 v8, v1, s65')
    for n in range(6):
        a(f'v_or_b32 v9, {(n & 1) << 1}, v7')
        a('v_lshlrev_b32 v9, 1, v9')
        a('v_xor_b32 v9, v9, v2')
        a('v_lshl_add_u32 v9, v9, 4, v8')
        a(f's_mul_i32 s65, s{lw}, 6')
        a(f's_add_u32 s65, s65, {n}')
        a('s_lshr_b32 s66, s65, 3')
        a('s_and_b32 s65, s65, 7')
        a(f's_mul_i32 s65, s65, {8 * 6144}')
        a('s_lshl_b32 s66, s66, 11')
        a('s_add_u32 s65, s65, s66')
        a(f's_lshl_b32 s66, s{S_J}, 7')
        a('s_add_u32 s65, s65, s66')
        a(f'v_add_u32 v{LB + n}, s65, v9')
    a('v_and_b32 v8, 15, v247')
    a('v_lshlrev_b32 v8, 2, v8')
    a(f's_lshl_b32 s65, s{S_I2}, 7')
    a('v_add_u32 v29, s65, v8')
    a(f's_max_u32 s66, s{S_I}, 1')
    a('s_sub_u32 s66, s66, 1')
    a('s_lshl_b32 s66, s66, 7')
    a(f's_lshl_b32 s65, s{S_I}, 7')
    a('v_add_u32 v28, s65, v8')
    a('v_add_u32 v9, s66, v8')
    a('v_cmp_le_u32 vcc, 16, v247')
    a('v_cndmask_b32 v28, v28, v9, vcc')
    a(f's_mov_b32 s{S_L}, 0')
    set_layer_srds(a)
    vm = VM()
    g1_prefetch_B(a, vm)
    pre = list(vm.q)
    a.label('l_layer')
    vm = VM(); vm.q = list(pre)
    mark(a, 0)
    a(f's_cmp_eq_u32 s{S_L}, 0')
    a('s_cbranch_scc1 l_nox')
    a(f's_cmp_lg_u32 s{lw}, 0')
    a('s_cbranch_scc1 l_nox')
    a(f's_lshl_b32 s67, s{S_L}, 1')
    a('s_sub_u32 s67, s67, 1')
    a('s_lshl_b32 s67, s67, 11')
    poll(a, 'x', 32, 28, 67)
    a.label('l_nox')
    mark(a, 1)
    a('s_barrier')
    for st in range(3):
        a(f's_mov_b32 s57, {st * 128}')
        g1_issue_A(a, vm, st, ('imm', st * SLOT), 57)
    mark(a, 2)
    vm.wait(a, lambda t: t == ('A', 0))
    a('s_barrier')
    mark(a, 3)
    vm.wait(a, lambda t: t == ('A', 1))
    a('s_barrier')
    a(f's_mov_b32 s57, {3 * 128}')
    a(f's_mov_b32 s58, {3 * 64 * 6144}')
    g1_issue_A(a, vm, 3, ('imm', 0), 57)
    g1_issue_B(a, vm, 3, ('imm', 0), 58)
    a(f's_mov_b32 s74, {SLOT}')
    a(f's_mov_b32 s75, {4 * 128}')
    a(f's_mov_b32 s76, {4 * 64 * 6144}')
    a('s_mov_b32 s77, 1')
    a.label('l_g1loop')
    a('s_waitcnt vmcnt(11)')
    a('s_barrier')
    dummy = VM()
    g1_issue_A(a, dummy, 0, ('s', 74), 75)
    g1_issue_B(a, dummy, 0, ('s', 74), 76)
    a(f's_add_u32 s74, s74, {SLOT}')
    a(f's_cmp_eq_u32 s74, {3 * SLOT}')
    a('s_cselect_b32 s74, 0, s74')
    a('s_add_u32 s75, s75, 128')
    a(f's_add_u32 s76, s76, {64 * 6144}')
    a('s_add_u32 s77, s77, 1')
    a('s_cmp_lt_u32 s77, 13')
    a('s_cbranch_scc1 l_g1loop')
    a('s_waitcnt vmcnt(11)')
    a('s_barrier')
    a('s_waitcnt vmcnt(0)')
    a('s_barrier')
    a('s_barrier')
    mark(a, 4)
    vm = VM()
    def g2_B(st):
        a(f's_add_u32 m0, s73, {(st % 6) * S2}')
        a(f's_mov_b32 s58, {st * 64 * 2048}')
        a(f'buffer_load_dwordx4 v{LB2}, {sr(SWO, 4)}, s58 offen lds')
        a('s_add_u32 m0, m0, 1024')
        a(f'buffer_load_dwordx4 v{LB2 + 1}, {sr(SWO, 4)}, s58 offen lds')
        vm.add(('S', st), 2)
    for st in range(6):
        g2_B(st)
    a('s_barrier')
    a(f's_cmp_lg_u32 s{lw}, 0')
    a('s_cbranch_scc1 l_noo')
    a(f's_lshl_b32 s67, s{S_L}, 12')
    poll(a, 'o', 16, 29, 67)
    a.label('l_noo')
    mark(a, 5)
    a('s_barrier')
    for st in range(6):
        a(f's_add_u32 m0, s70, {st * S2}')
        a(f's_mov_b32 s57, {st * 128}')
        a(f'buffer_load_dwordx4 v{LA2}, {sr(SO, 4)}, s57 offen lds')
        a('s_add_u32 m0, m0, 1024')
        a(f'buffer_load_dwordx4 v{LA2 + 1}, {sr(SO, 4)}, s57 offen lds')
        vm.add(('S', st), 2)
    def wait_stage(st):
        last = max(k for k, t in enumerate(vm.q) if t == ('S', st))
        n = len(vm.q) - 1 - last
        a(f's_waitcnt vmcnt({n})')
    wait_stage(0)
    a('s_barrier')
    mark(a, 6)
    for u in range(15):
        wait_stage(u + 1)
        a('s_barrier')
        st = u + 5
        if u >= 1 and st <= 15:
            a(f's_add_u32 m0, s70, {(st % 6) * S2}')
            a(f's_mov_b32 s57, {st * 128}')
            for n in range(4):
                a(f'buffer_load_dwordx4 v{LA2 + n}, {sr(SO, 4)}, s57 offen lds')
                if n < 3: a('s_add_u32 m0, m0, 1024')
            vm.add(('S', st), 4)
            g2_B(st)
    a('s_barrier')
    mark(a, 7)
    a(f's_cmp_eq_u32 s{S_L}, 3')
    a('s_cbranch_scc1 l_done')
    a(f's_add_u32 s{S_L}, s{S_L}, 1')
    set_layer_srds(a)
    g1_prefetch_B(a, VM())
    prof_next_layer(a)
    a('s_branch l_layer')
    a.label('l_done')
    prof_dump(a)
    a('s_endpgm')

def gen_main():
    a = Asm()
    a.label('main_kernel')
    a('s_cmp_ge_u32 s2, 256')
    a('s_cbranch_scc1 m_exit')
    a(f's_load_dwordx2 {sr(P_X, 2)}, s[0:1], 0')
    a(f's_load_dwordx2 {sr(P_WA, 2)}, s[0:1], 8')
    a(f's_load_dwordx2 {sr(P_OA, 2)}, s[0:1], 16')
    a(f's_load_dwordx2 {sr(P_WB, 2)}, s[0:1], 32')
    a(f's_load_dwordx2 {sr(P_OB, 2)}, s[0:1], 40')
    a(f's_load_dwordx2 {sr(P_OUT, 2)}, s[0:1], 48')
    a(f's_load_dwordx2 {sr(P_WS, 2)}, s[0:1], 64')
    a('s_and_b32 s57, s2, 7')
    a('s_lshr_b32 s58, s2, 3')
    a(f's_and_b32 s{S_I}, s57, 1')
    a(f's_lshl_b32 s{S_I}, s{S_I}, 3')
    a('s_and_b32 s59, s58, 7')
    a(f's_add_u32 s{S_I}, s{S_I}, s59')
    a(f's_lshr_b32 s{S_J}, s57, 1')
    a(f's_lshl_b32 s{S_J}, s{S_J}, 2')
    a('s_lshr_b32 s59, s58, 3')
    a(f's_add_u32 s{S_J}, s{S_J}, s59')
    a(f's_and_b32 s{S_I2}, s57, 3')
    a(f's_lshl_b32 s{S_I2}, s{S_I2}, 2')
    a('s_and_b32 s59, s58, 3')
    a(f's_add_u32 s{S_I2}, s{S_I2}, s59')
    a(f's_lshr_b32 s{S_J2}, s57, 2')
    a(f's_lshl_b32 s{S_J2}, s{S_J2}, 3')
    a('s_lshr_b32 s59, s58, 2')
    a(f's_add_u32 s{S_J2}, s{S_J2}, s59')
    a('v_lshrrev_b32 v1, 6, v0')
    a(f'v_readfirstlane_b32 s{S_W}, v1')
    a('v_and_b32 v247, 63, v0')
    if PROF:
        a(f's_lshl_b32 s57, s{S_W}, 8')
        a(f's_add_u32 s57, s57, {PROF_LDS}')
        a('v_mov_b32 v254, s57')
    a('s_waitcnt lgkmcnt(0)')
    const_srds(a)
    a(f's_cmp_ge_u32 s{S_W}, 4')
    a('s_cbranch_scc1 loader')
    a(f's_and_b32 s{S_H}, s{S_W}, 1')
    a(f'v_mov_b32 v1, {T_CNT}')
    a('v_mov_b32 v2, 0')
    a('v_mov_b32 v3, 0')
    a('ds_write_b64 v1, v[2:3]')
    srd(a, 60, P_WS, 4 * 2 * 3072 * 4, CS_OFF)
    a('v_lshrrev_b32 v6, 6, v0')
    a('v_lshlrev_b32 v6, 10, v6')
    a('v_add_u32 v6, v6, v247')
    a(f's_lshl_b32 s57, s{S_J}, 6')
    a('v_add_u32 v6, s57, v6')
    a('v_lshlrev_b32 v6, 2, v6')
    a(f'v_mov_b32 v5, {OOB}')
    a('v_cmp_le_u32 vcc, 192, v0')
    a('v_cndmask_b32 v6, v6, v5, vcc')
    for m in range(2):
        for kq in range(4):
            a(f's_mov_b32 s57, {m * 12288 + kq * 24576}')
            a(f'buffer_load_dword v{200 + 4 * m + kq}, v6, s[60:63], s57 offen')
    a('v_lshrrev_b32 v1, 3, v247')
    a('v_and_b32 v2, 7, v247')
    a('v_lshrrev_b32 v7, 1, v1')
    a(f's_lshl_b32 s57, s{S_I2}, 7')
    a(f's_lshl_b32 s58, s{S_W}, 5')
    a('s_add_u32 s57, s57, s58')
    for k in range(2):
        a(f'v_add_u32 v8, {16 + 8 * k}, v1')
        a('v_add_u32 v8, s57, v8')
        a(f'v_xor_b32 v9, {4 * k}, v7')
        a('v_xor_b32 v9, v9, v2')
        a('v_lshlrev_b32 v9, 4, v9')
        a(f'v_lshl_add_u32 v{VA2 + k}, v8, 11, v9')
    a('v_lshlrev_b32 v208, 2, v0')
    a(f'v_add_u32 v208, {T_CS}, v208')
    a('v_mov_b32 v209, v0')
    a(f's_mov_b32 s{S_L}, 0')
    a.label('c_layer')
    set_layer_srds(a)
    mark(a, 0)
    a('v_and_b32 v1, 15, v247')
    a('v_lshrrev_b32 v2, 4, v247')
    a('v_lshrrev_b32 v3, 1, v1')
    a('v_xor_b32 v4, v2, v3')
    a('v_lshlrev_b32 v4, 4, v4')
    a(f'v_lshl_add_u32 v{XA0}, v1, 7, v4')
    a(f'v_xor_b32 v{XA1}, 64, v{XA0}')
    a('v_lshrrev_b32 v3, 2, v1')
    a('v_and_b32 v4, 3, v1')
    a('v_lshrrev_b32 v5, 1, v3')
    a('v_and_b32 v6, 1, v2')
    a('v_lshl_or_b32 v5, v6, 1, v5')
    a('v_lshlrev_b32 v5, 1, v5')
    a('v_lshrrev_b32 v6, 1, v4')
    a(f's_lshl_b32 s57, s{S_H}, 2')
    a('v_add_u32 v6, s57, v6')
    a('v_xor_b32 v6, v6, v5')
    a('v_lshlrev_b32 v6, 4, v6')
    a('v_and_b32 v7, 1, v4')
    a('v_lshl_add_u32 v6, v7, 3, v6')
    a('v_lshl_add_u32 v7, v2, 3, v3')
    a('v_lshl_add_u32 v6, v7, 7, v6')
    a(f'v_add_u32 v{WA0}, {BOFF}, v6')
    a(f'v_xor_b32 v{WA1}, 32, v{WA0}')
    a(f's_lshl_b32 s57, s{S_W}, 6')
    a('v_add_u32 v196, s57, v247')
    a(f's_lshl_b32 s58, s{S_I}, 7')
    a('s_sub_u32 s58, s58, 16')
    a('v_add_u32 v197, s58, v196')
    a('v_cmp_le_u32 vcc, 144, v196')
    a('s_mov_b64 s[60:61], vcc')
    a('v_cmp_gt_i32 vcc, 0, v197')
    a('s_or_b64 vcc, vcc, s[60:61]')
    a('v_lshlrev_b32 v197, 3, v197')
    a(f'v_mov_b32 v198, {OOB}')
    a('v_cndmask_b32 v197, v197, v198, vcc')
    a('v_lshlrev_b32 v198, 2, v196')
    a(f'v_add_u32 v198, {T_NM}, v198')
    for r in range(104):
        a(f'v_mov_b32 v{r}, 0')
    a('s_waitcnt lgkmcnt(0)')
    a('s_barrier')
    for jj in range(16):
        a(f's_mov_b32 s57, {jj * 16384}')
        a(f'buffer_load_dwordx2 {vr(104 + 2 * jj, 2)}, v197, {sr(SSI, 4)}, s57 offen')
    for jj in range(1, 16):
        a(f's_waitcnt vmcnt({15 - jj})')
        a(f'v_pk_add_f32 v[104:105], v[104:105], {vr(104 + 2 * jj, 2)}')
    a(f's_cmp_lg_u32 s{S_L}, 0')
    a('s_cbranch_scc1 c_nocs')
    for m in range(2):
        a(f'v_add_f32 v{200 + 4 * m}, v{200 + 4 * m}, v{201 + 4 * m}')
        a(f'v_add_f32 v{202 + 4 * m}, v{202 + 4 * m}, v{203 + 4 * m}')
        a(f'v_add_f32 v{200 + 4 * m}, v{200 + 4 * m}, v{202 + 4 * m}')
    a('v_cmp_gt_u32 vcc, 192, v209')
    a('s_and_saveexec_b64 s[60:61], vcc')
    a('s_cbranch_execz c_nocs1')
    a('ds_write_b32 v208, v200')
    a('ds_write_b32 v208, v204 offset:768')
    a.label('c_nocs1')
    a('s_mov_b64 exec, s[60:61]')
    a.label('c_nocs')
    a('v_mul_f32 v104, 0x3a800000, v104')
    a('v_mul_f32 v105, 0x3a800000, v105')
    a('v_fma_f32 v105, -v104, v104, v105')
    a('v_max_f32 v105, 0, v105')
    a('v_add_f32 v105, 0x3727c5ac, v105')
    a('v_rsq_f32 v105, v105')
    a('v_sub_f32 v104, 0, v104')
    a('v_cmp_gt_u32 vcc, 144, v196')
    a('s_and_saveexec_b64 s[60:61], vcc')
    a('s_cbranch_execz c_not')
    a('ds_write_b32 v198, v104')
    a('ds_write_b32 v198, v105 offset:576')
    a.label('c_not')
    a('s_mov_b64 exec, s[60:61]')
    a('s_waitcnt lgkmcnt(0)')
    a(f's_cmp_ge_u32 s{S_W}, 2')
    a('s_cbranch_scc1 g1c1')
    a.extend(g1_compute(0))
    a.extend(g1_compute(1))
    g2_compute(a)
    a(f's_add_u32 s{S_L}, s{S_L}, 1')
    prof_next_layer(a)
    a('s_branch c_layer')
    a.label('c_done')
    mark(a, 10)
    prof_dump(a)
    a('s_endpgm')
    loader(a)
    a.label('m_exit')
    a('s_endpgm')
    return fix_hazards(a.lines)

def desc(name, vgpr=256, sgpr=96):
    return f'''.amdhsa_kernel {name}
  .amdhsa_next_free_vgpr {vgpr}
  .amdhsa_next_free_sgpr {sgpr}
  .amdhsa_accum_offset {vgpr}
  .amdhsa_group_segment_fixed_size 0
  .amdhsa_kernarg_size 72
  .amdhsa_user_sgpr_count 2
  .amdhsa_user_sgpr_kernarg_segment_ptr 1
  .amdhsa_system_sgpr_workgroup_id_x 1
.end_amdhsa_kernel
'''

def build():
    launches = [('p_kernel', 256, 256, 8192), ('main_kernel', 256, 512, LDS_BYTES)]
    out = [HEADER.rstrip()]
    for k, g, b, lds in launches:
        out.append(f'; @launch kernel={k} grid=({g},1,1) block=({b},1,1) lds={lds}')
    out.append('.amdgcn_target "amdgcn-amd-amdhsa--gfx950"')
    out.append('.text')
    def kern(name, lines):
        out.append(f'.globl {name}')
        out.append('.p2align 8')
        out.append(f'.type {name},@function')
        out.extend(lines)
    kern('p_kernel', gen_P())
    kern('main_kernel', gen_main())
    out.append('.section .rodata,"a"')
    for n in ('p_kernel', 'main_kernel'):
        out.append('.p2align 6')
        out.append(desc(n, 128 if n == 'p_kernel' else 256))
    return '\n'.join(out) + '\n'

if __name__ == '__main__':
    dst = sys.argv[1] if len(sys.argv) > 1 else f'cdna_kernels/{NAME}.s'
    open(dst, 'w').write(build())
    print('wrote', dst)
```

```python
import sys, os, re, struct
sys.path.insert(0, 'dev')
from asmlib import Asm, fix_hazards, vr, sr

NAME = 'interleave_layers__sliding_local_dilated__sliding_local_dilated__prompt'
KERN = NAME + '_kernel'
MB = 1 << 20
O_OFF = 16 * MB
ST_OFF = 32 * MB
FL_OFF = 34 * MB
PROF_OFF = 40 * MB
OOB = 0x40000000
E = os.environ.get
PROF = int(E('PROF', '0'))
SPIN_MAX = 1 << 16
PFD = int(E('PFD', '6'))
NP = int(E('NP', '12'))
OPF = int(E('OPF', '0'))

HEADER = '''; Kernarg layout for this problem (72 bytes, ptrs only, base s[0:1]):
'''

def srd(a, d, base, nbytes, off=0):
    if off:
        a(f's_add_u32 s{d}, s{base}, {off}')
        a(f's_addc_u32 s{d+1}, s{base+1}, 0')
    else:
        a(f's_mov_b32 s{d}, s{base}')
        a(f's_mov_b32 s{d+1}, s{base+1}')
    a(f's_mov_b32 s{d+2}, {nbytes}')
    a(f's_mov_b32 s{d+3}, 0x20000')

def interleave(a, mf, other, start=0, per=1):
    o = list(other)
    for n, m in enumerate(mf):
        a(m)
        if n >= start:
            for _ in range(per):
                if o: a(o.pop(0))
    for x in o:
        a(x)

class VM:
    def __init__(self): self.q = []
    def add(self, tag, n=1): self.q += [tag] * n
    def need(self, pred):
        last = -1
        for k, t in enumerate(self.q):
            if pred(t): last = k
        assert last >= 0
        return len(self.q) - 1 - last
    def wait(self, a, pred, extra=''):
        n = self.need(pred)
        assert n <= 63
        a(f's_waitcnt vmcnt({n}){extra}')

SLOT = 43008
BOFF = 18432
B2 = 8192
PT = B2 + 16 * 8192
T_NM = PT
T_RS = PT + 576
T_CS = PT + 1152
T_CNT = PT + 1152 + 1536
PROF_LDS = PT + 3072
LDS_BYTES = PROF_LDS + 2048 if PROF else PT + 3072

SX, SW, SO, SSI, SWO, SD, SSO, SFL = 4, 8, 12, 16, 20, 24, 28, 32
P_WS, P_X, P_OUT, P_WA, P_WB, P_OA, P_OB = 36, 38, 40, 42, 44, 46, 48
S_L, S_I, S_J, S_I2, S_J2, S_W, S_H = 50, 51, 52, 53, 54, 55, 56
SDBG = 80

def mark(a, n):
    if not PROF: return
    a('s_memrealtime s[90:91]')
    a('s_waitcnt lgkmcnt(0)')
    a('v_mov_b32 v255, s90')
    a(f'ds_write_b32 v254, v255 offset:{4 * n}')
    a('s_waitcnt lgkmcnt(0)')

def prof_next_layer(a):
    if PROF: a('v_add_u32 v254, 64, v254')

def prof_dump(a):
    if not PROF: return
    a('s_waitcnt lgkmcnt(0)')
    a(f's_lshl_b32 s57, s{S_W}, 8')
    a(f'v_lshlrev_b32 v1, 2, v247')
    a(f'v_add_u32 v2, s57, v1')
    a(f'v_add_u32 v2, {PROF_LDS}, v2')
    a('ds_read_b32 v3, v2')
    a(f's_add_u32 s60, s{P_WS}, {PROF_OFF}')
    a(f's_addc_u32 s61, s{P_WS + 1}, 0')
    a('s_mov_b32 s62, 0x100000')
    a('s_mov_b32 s63, 0x20000')
    a('s_lshl_b32 s58, s2, 11')
    a('s_add_u32 s58, s58, s57')
    a('s_waitcnt lgkmcnt(0)')
    a('buffer_store_dword v3, v1, s[60:63], s58 offen')
    a('s_waitcnt vmcnt(0)')

def sel_w(a, flip):
    a(f's_bitcmp1_b32 s{S_L}, 0')
    x, y = (P_WB, P_WA) if not flip else (P_WA, P_WB)
    a(f's_cselect_b32 s{SW}, s{x}, s{y}')
    a(f's_cselect_b32 s{SW + 1}, s{x + 1}, s{y + 1}')

def set_layer_srds(a):
    L = S_L
    a(f's_lshl_b32 s57, s{L}, 22')
    a(f's_add_u32 s58, s{P_WS}, s57')
    a(f's_addc_u32 s59, s{P_WS + 1}, 0')
    a(f's_cmp_eq_u32 s{L}, 0')
    a(f's_cselect_b32 s{SX}, s{P_X}, s58')
    a(f's_cselect_b32 s{SX + 1}, s{P_X + 1}, s59')
    a(f's_mov_b32 s57, {256 << 10}')
    a(f's_cselect_b32 s{SSI + 2}, 16384, s57')
    a(f's_add_u32 s{SO}, s58, {O_OFF}')
    a(f's_addc_u32 s{SO + 1}, s59, 0')
    a(f's_add_u32 s58, s58, {4 * MB}')
    a(f's_addc_u32 s59, s59, 0')
    a(f's_cmp_eq_u32 s{L}, 3')
    a(f's_cselect_b32 s{SD}, s{P_OUT}, s58')
    a(f's_cselect_b32 s{SD + 1}, s{P_OUT + 1}, s59')
    a(f's_lshl_b32 s57, s{L}, 18')
    a(f's_add_u32 s57, s57, {ST_OFF}')
    a(f's_add_u32 s{SSI}, s{P_WS}, s57')
    a(f's_addc_u32 s{SSI + 1}, s{P_WS + 1}, 0')
    a(f's_add_u32 s{SSO}, s{SSI}, {256 << 10}')
    a(f's_addc_u32 s{SSO + 1}, s{SSI + 1}, 0')
    sel_w(a, 0)
    a(f's_cselect_b32 s{SWO}, s{P_OB}, s{P_OA}')
    a(f's_cselect_b32 s{SWO + 1}, s{P_OB + 1}, s{P_OA + 1}')

def const_srds(a):
    for d, n in ((SX, 4 * MB), (SW, 1024 * 6144), (SO, 4 * MB), (SSI, 256 << 10), (SWO, 2 * MB), (SD, 4 * MB), (SSO, 256 << 10)):
        a(f's_mov_b32 s{d + 2}, {n}')
        a(f's_mov_b32 s{d + 3}, 0x20000')
    srd(a, SFL, P_WS, 16384, FL_OFF)
    a(f's_mov_b32 s{SDBG + 2}, 256')
    a(f's_mov_b32 s{SDBG + 3}, 0x20000')

def poll(a, tag, nl, voff, soff_s):
    a('s_mov_b32 exec_hi, 0')
    a(f's_mov_b32 exec_lo, {hex((1 << nl) - 1)}')
    a('s_mov_b32 s66, 0')
    a.label(f'poll_{tag}')
    a(f'buffer_load_dword v30, v{voff}, {sr(SFL, 4)}, s{soff_s} offen sc1')
    a('s_waitcnt vmcnt(0)')
    a('v_cmp_ne_u32 vcc, 0, v30')
    a(f's_cmp_eq_u32 vcc_lo, {hex((1 << nl) - 1)}')
    a(f's_cbranch_scc1 poll_{tag}_ok')
    a('s_add_u32 s66, s66, 1')
    a(f's_cmp_lt_u32 s66, {SPIN_MAX}')
    a(f's_cbranch_scc0 poll_{tag}_ok')
    a('s_sleep 1')
    a(f's_branch poll_{tag}')
    a.label(f'poll_{tag}_ok')
    a('s_mov_b64 exec, -1')

def count4(a, tag, cnt):
    a(f'v_mov_b32 v236, {T_CNT + 4 * cnt}')
    a('v_mov_b32 v237, 1')
    a('s_mov_b64 exec, 1')
    a('ds_add_rtn_u32 v238, v236, v237')
    a('s_waitcnt lgkmcnt(0)')
    a('v_readfirstlane_b32 s57, v238')
    a('s_and_b32 s57, s57, 3')
    a('s_cmp_eq_u32 s57, 3')
    a(f's_cbranch_scc0 sig_{tag}_skip')

def signal(a, tag, ph, s_row, s_col):
    count4(a, tag, ph)
    a(f's_lshl_b32 s57, s{S_L}, 1')
    a(f's_add_u32 s57, s57, {ph}')
    a('s_lshl_b32 s57, s57, 4')
    a(f's_add_u32 s57, s57, s{s_row}')
    a('s_lshl_b32 s57, s57, 7')
    a(f's_lshl_b32 s58, s{s_col}, 2')
    a('s_add_u32 s57, s57, s58')
    a('v_mov_b32 v236, 0')
    a(f'buffer_store_dword v237, v236, {sr(SFL, 4)}, s57 offen sc1')
    a.label(f'sig_{tag}_skip')
    a('s_mov_b64 exec, -1')

QA, KA, VA, HA = 0, 32, 64, 96
QX = 248
PFA, PFD_ = 252, 253
F = [dict(x=104, w=124), dict(x=148, w=168)]
XA0, XA1, WA0, WA1 = 192, 193, 194, 195

def g1_reads(fs, hf, kk):
    xa = XA0 if kk == 0 else XA1
    xb, wb = F[fs]['x'], F[fs]['w']
    xs = [f'ds_read_b128 {vr(xb + 4 * b, 4)}, v{xa} offset:{(0 if b == 0 else (4 * hf + b)) * 2048}' for b in range(5)]
    ws = []
    for seg in range(3):
        for db in range(2):
            for u in range(2):
                r = wb + (seg * 2 + db) * 4 + 2 * u
                ws.append(f'ds_read_b64_tr_b16 {vr(r, 2)}, v{WA0 + db} offset:{seg * 8192 + kk * 4096 + u * 512}')
    return ws[0:4] + [xs[1]] + ws[4:8] + [xs[2]] + ws[8:12] + [xs[3], xs[4], xs[0]]

def g1_mfmas(fs, hf, qx):
    out = []
    xb, wb = F[fs]['x'], F[fs]['w']
    X = lambda b: vr(xb + 4 * b, 4)
    W = lambda seg, db: vr(wb + (seg * 2 + db) * 4, 4)
    for b in range(1, 5):
        for db in range(2):
            q = vr(QA + ((b - 1) * 2 + db) * 4, 4)
            out.append(f'v_mfma_f32_16x16x32_bf16 {q}, {W(0, db)}, {X(b)}, {q}')
        for db in range(2):
            q = vr(KA + ((b - 1) * 2 + db) * 4, 4)
            out.append(f'v_mfma_f32_16x16x32_bf16 {q}, {W(1, db)}, {X(b)}, {q}')
        for db in range(2):
            q = vr(VA + ((b - 1) * 2 + db) * 4, 4)
            out.append(f'v_mfma_f32_16x16x32_bf16 {q}, {X(b)}, {W(2, db)}, {q}')
    for db in range(2):
        q = vr(HA + db * 4, 4)
        if hf == 0:
            out.append(f'v_mfma_f32_16x16x32_bf16 {q}, {W(1, db)}, {X(0)}, {q}')
        else:
            out.append(f'v_mfma_f32_16x16x32_bf16 {q}, {X(0)}, {W(2, db)}, {q}')
    if qx:
        q = vr(QX, 4)
        out.append(f'v_mfma_f32_16x16x32_bf16 {q}, {W(0, hf)}, {X(0)}, {q}')
    return out

T_NM1, T_RS1 = 104, 109
T_CQ, T_CK = 114, 122
T_CV = 130
T_NM4, T_RS4 = 196, 216

def g1_loop(a, hf, qx):
    L = f'g1c{hf}{qx}'
    a.label(L)
    mark(a, 1)
    a('s_barrier')
    mark(a, 2)
    for r in g1_reads(0, hf, 0):
        a(r)
    a('s_mov_b32 s70, 0')
    a('s_mov_b32 s71, 0')
    a(f's_mov_b32 s72, {-2 * SLOT & 0xffffffff}')
    a(f's_mov_b32 s73, {SLOT}')
    a.label(L + '_loop')
    a('s_waitcnt lgkmcnt(0)')
    a('s_cmp_eq_u32 s71, 2')
    a('s_cselect_b32 s74, s72, s73')
    a('s_cselect_b32 s71, -1, s71')
    a('s_add_u32 s71, s71, 1')
    rd = g1_reads(1, hf, 1)
    adv = [f'v_add_u32 v{r}, s74, v{r}' for r in (XA0, XA1, WA0, WA1)]
    pf = []
    if PFD:
        pf = [f'buffer_load_dword v{PFD_}, v{PFA}, {sr(SW, 4)}, s88 offen', f's_add_u32 s88, s88, {64 * 6144}']
    interleave(a, g1_mfmas(0, hf, qx), rd + adv + pf)
    a('s_waitcnt lgkmcnt(0)')
    a('s_barrier')
    a('s_cmp_eq_u32 s70, 15')
    a(f's_cbranch_scc1 {L}_last')
    interleave(a, g1_mfmas(1, hf, qx), g1_reads(0, hf, 0))
    a('s_add_u32 s70, s70, 1')
    a(f's_branch {L}_loop')
    a.label(L + '_last')
    mark(a, 3)
    a('v_and_b32 v246, 15, v247')
    a('v_lshrrev_b32 v245, 4, v247')
    a('v_lshlrev_b32 v244, 2, v246')
    a('v_lshlrev_b32 v243, 4, v245')
    a(f's_lshl_b32 s57, s{S_H}, 7')
    a(f's_and_b32 s58, s{S_L}, 1')
    a('s_mul_i32 s58, s58, 768')
    a('s_add_u32 s57, s57, s58')
    a(f's_add_u32 s57, s57, {T_CS}')
    a('v_add_u32 v242, s57, v243')
    a('v_add_u32 v241, s57, v244')
    a(f'v_add_u32 v244, {T_NM}, v244')
    a(f'v_add_u32 v243, {T_NM}, v243')
    rds = []
    for b in range(5):
        rb = 0 if b == 0 else 4 * hf + b
        if b > 0 or hf == 0:
            rds.append(f'ds_read_b32 v{T_NM1 + b}, v244 offset:{rb * 64}')
            rds.append(f'ds_read_b32 v{T_RS1 + b}, v244 offset:{576 + rb * 64}')
        if b > 0 or hf == 1:
            rds.append(f'ds_read_b128 {vr(T_NM4 + 4 * b, 4)}, v243 offset:{rb * 64}')
            rds.append(f'ds_read_b128 {vr(T_RS4 + 4 * b, 4)}, v243 offset:{576 + rb * 64}')
    csr = []
    for db in range(2):
        csr.append(f'ds_read_b128 {vr(T_CQ + 4 * db, 4)}, v242 offset:{db * 64}')
        csr.append(f'ds_read_b128 {vr(T_CK + 4 * db, 4)}, v242 offset:{256 + db * 64}')
        csr.append(f'ds_read_b32 v{T_CV + db}, v241 offset:{512 + db * 64}')
    if not qx:
        interleave(a, g1_mfmas(1, hf, qx), rds + csr)
        a('s_waitcnt lgkmcnt(0)')
    else:
        interleave(a, g1_mfmas(1, hf, qx), rds)
        a('s_mov_b32 exec_lo, 0x10001')
        a('s_mov_b32 exec_hi, 0x10001')
        a(f'ds_write_b128 v242, {vr(QX, 4)} offset:{hf * 64}')
        if hf == 0:
            for db in range(2):
                a(f'ds_write_b128 v242, {vr(HA + 4 * db, 4)} offset:{256 + db * 64}')
        else:
            a('s_mov_b32 exec_lo, 0xffff')
            a('s_mov_b32 exec_hi, 0')
            for db in range(2):
                a(f'ds_write_b32 v241, v{HA + 4 * db} offset:{512 + db * 64}')
        a('s_mov_b64 exec, -1')
        a('s_waitcnt lgkmcnt(0)')
        a('s_barrier')
        for r in csr: a(r)
        a('s_waitcnt lgkmcnt(0)')

def g1_compute(hf):
    a = Asm()
    a.label(f'g1c{hf}')
    a(f's_cmp_ge_u32 s{S_L}, 2')
    a(f's_cbranch_scc1 g1c{hf}0')
    g1_loop(a, hf, 1)
    a(f's_branch g1e{hf}')
    g1_loop(a, hf, 0)
    a.label(f'g1e{hf}')
    QF, KF = 132, 148
    VF = [168, 178]
    CL = 188
    SC = 0.17677669529663687 * 1.4426950408889634
    scbits = struct.unpack('<I', struct.pack('<f', SC))[0]
    a(f's_mov_b32 s75, {scbits}')
    def conv1(acc, dst, cs, nm, rs):
        for db in range(2):
            for hh in range(2):
                p = vr(acc + db * 4 + 2 * hh, 2)
                a(f'v_pk_fma_f32 {p}, {vr(cs + db * 4 + 2 * hh, 2)}, {vr(nm & ~1, 2)}, {p} op_sel:[0,{nm & 1},0] op_sel_hi:[1,{nm & 1},1]')
                if rs is not None:
                    a(f'v_pk_mul_f32 {p}, {p}, {vr(rs & ~1, 2)} op_sel:[0,{rs & 1}] op_sel_hi:[1,{rs & 1}]')
        for db in range(2):
            for hh in range(2):
                a(f'v_cvt_pk_bf16_f32 v{dst + db * 2 + hh}, v{acc + db * 4 + 2 * hh}, v{acc + db * 4 + 2 * hh + 1}')
    def conv2(acc, b):
        for db in range(2):
            cv = T_CV + db
            for hh in range(2):
                p = vr(acc + db * 4 + 2 * hh, 2)
                a(f'v_pk_fma_f32 {p}, {vr(T_NM4 + 4 * b + 2 * hh, 2)}, {vr(cv & ~1, 2)}, {p} op_sel:[0,{cv & 1},0] op_sel_hi:[1,{cv & 1},1]')
                a(f'v_pk_mul_f32 {p}, {p}, {vr(T_RS4 + 4 * b + 2 * hh, 2)}')
        for db in range(2):
            for hh in range(2):
                a(f'v_cvt_pk_bf16_f32 v{VF[db] + 2 * b + hh}, v{acc + db * 4 + 2 * hh}, v{acc + db * 4 + 2 * hh + 1}')
    a(f's_lshl_b32 s57, s{S_H}, 12')
    a('v_lshlrev_b32 v240, 4, v247')
    a('v_add_u32 v240, s57, v240')
    a('v_lshlrev_b32 v239, 3, v247')
    a('v_add_u32 v239, s57, v239')
    if hf == 0:
        conv1(KA + 3 * 8, KF + 16, T_CK, T_NM1 + 4, T_RS1 + 4)
        conv2(VA + 3 * 8, 4)
        a(f'ds_write_b128 v240, {vr(KF + 16, 4)}')
        a(f'ds_write_b64 v239, {vr(VF[0] + 8, 2)} offset:1024')
        a(f'ds_write_b64 v239, {vr(VF[1] + 8, 2)} offset:1536')
        conv1(HA, KF, T_CK, T_NM1, T_RS1)
        rest_k, rest_v = (1, 2, 3), (1, 2, 3)
    else:
        conv2(HA, 0)
        a(f'ds_write_b64 v239, {vr(VF[0], 2)} offset:2048')
        a(f'ds_write_b64 v239, {vr(VF[1], 2)} offset:2560')
        rest_k, rest_v = (1, 2, 3, 4), (1, 2, 3, 4)
    a('s_waitcnt lgkmcnt(0)')
    mark(a, 4)
    a('s_barrier')
    if hf == 0:
        a(f'ds_read_b64 {vr(VF[0], 2)}, v239 offset:2048')
        a(f'ds_read_b64 {vr(VF[1], 2)}, v239 offset:2560')
    else:
        a(f'ds_read_b128 {vr(KF, 4)}, v240')
        a(f'ds_read_b64 {vr(VF[0], 2)}, v239 offset:1024')
        a(f'ds_read_b64 {vr(VF[1], 2)}, v239 offset:1536')
    for b in range(1, 5):
        conv1(QA + (b - 1) * 8, QF + (b - 1) * 4, T_CQ, T_NM1 + b, None)
        a(f'v_mul_f32 v{CL + b - 1}, s75, v{T_RS1 + b}')
    for b in rest_k:
        conv1(KA + (b - 1) * 8, KF + 4 * b, T_CK, T_NM1 + b, T_RS1 + b)
    for b in rest_v:
        conv2(VA + (b - 1) * 8, b)
    BP, BC, BP1 = 0, 4, 8
    ONES = 12
    a('s_mov_b32 s76, 0xff800000')
    for r in range(4):
        a(f'v_lshl_add_u32 v100, v245, 2, {r}')
        a('v_sub_u32 v100, v100, v246')
        a('v_and_b32 v101, 1, v100')
        a('v_cmp_eq_u32 s[60:61], 0, v101')
        a('v_cmp_le_i32 s[62:63], 2, v100')
        a('v_cmp_ge_i32 s[64:65], 0, v100')
        a('s_and_b64 s[62:63], s[62:63], s[60:61]')
        a('s_and_b64 s[64:65], s[64:65], s[60:61]')
        a(f'v_mov_b32 v102, s76')
        a(f'v_cndmask_b32 v{BP + r}, v102, 0, s[62:63]')
        a(f'v_cndmask_b32 v{BC + r}, v102, 0, s[64:65]')
        if hf == 0:
            a(f's_cmp_eq_u32 s{S_I}, 0')
            a('s_cselect_b64 s[62:63], 0, s[62:63]')
        a(f'v_cndmask_b32 v{BP1 + r}, v102, 0, s[62:63]')
        a(f'v_mov_b32 v{ONES + r}, 0x3f803f80')
    a('v_and_b32 v100, 1, v245')
    a('v_lshlrev_b32 v100, 1, v100')
    a('v_lshrrev_b32 v101, 1, v245')
    a('v_add_u32 v100, v100, v101')
    a('v_lshl_add_u32 v100, v100, 4, v246')
    a('v_lshlrev_b32 v100, 4, v100')
    a(f's_lshl_b32 s57, s{S_I}, 4')
    a(f's_add_u32 s57, s57, s{S_J}')
    a('s_lshl_b32 s57, s57, 14')
    a(f's_lshl_b32 s58, s{S_H}, 10')
    a('s_add_u32 s57, s57, s58')
    a(f's_add_u32 s57, s57, {hf * 4 * 2048}')
    a('v_add_u32 v100, s57, v100')
    OADDR = 100
    a('s_waitcnt lgkmcnt(0)')
    base = lambda b: 16 + (b - 1) * 20
    SPr = lambda b: base(b)
    SCu = lambda b: base(b) + 4
    PP = lambda b: base(b) + 8
    MX = lambda b: base(b) + 12
    MT = lambda b: base(b) + 13
    SUM = lambda b: 196 + (b - 1) * 12
    O0 = lambda b: 196 + (b - 1) * 12 + 4
    O1 = lambda b: 196 + (b - 1) * 12 + 8
    for b in range(1, 5):
        q = vr(QF + (b - 1) * 4, 4)
        a(f'v_mfma_f32_16x16x32_bf16 {vr(SPr(b), 4)}, {vr(KF + 4 * (b - 1), 4)}, {q}, 0')
        a(f'v_mfma_f32_16x16x32_bf16 {vr(SCu(b), 4)}, {vr(KF + 4 * b, 4)}, {q}, 0')
    for b in range(1, 5):
        for r in range(4):
            bp = (BP1 if b == 1 else BP) + r
            a(f'v_fma_f32 v{SPr(b) + r}, v{SPr(b) + r}, v{CL + b - 1}, v{bp}')
            a(f'v_fma_f32 v{SCu(b) + r}, v{SCu(b) + r}, v{CL + b - 1}, v{BC + r}')
    for b in range(1, 5):
        s, c = SPr(b), SCu(b)
        a(f'v_max3_f32 v{MX(b)}, v{s}, v{s + 1}, v{s + 2}')
        a(f'v_max3_f32 v{MT(b)}, v{s + 3}, v{c}, v{c + 1}')
        a(f'v_max3_f32 v{MX(b)}, v{MX(b)}, v{c + 2}, v{c + 3}')
        a(f'v_max_f32 v{MX(b)}, v{MX(b)}, v{MT(b)}')
    for swap in ('v_permlane32_swap_b32', 'v_permlane16_swap_b32'):
        for b in range(1, 5):
            a(f'v_mov_b32 v{MT(b)}, v{MX(b)}')
        for b in range(1, 5):
            a(f'{swap} v{MX(b)}, v{MT(b)}')
        for b in range(1, 5):
            a(f'v_max_f32 v{MX(b)}, v{MX(b)}, v{MT(b)}')
    for b in range(1, 5):
        for r in range(8):
            a(f'v_sub_f32 v{SPr(b) + r}, v{SPr(b) + r}, v{MX(b)}')
    for b in range(1, 5):
        for r in range(8):
            a(f'v_exp_f32 v{SPr(b) + r}, v{SPr(b) + r}')
    for b in range(1, 5):
        for r in range(4):
            a(f'v_cvt_pk_bf16_f32 v{PP(b) + r}, v{SPr(b) + 2 * r}, v{SPr(b) + 2 * r + 1}')
    for b in range(1, 5):
        p = vr(PP(b), 4)
        a(f'v_mfma_f32_16x16x32_bf16 {vr(SUM(b), 4)}, {vr(ONES, 4)}, {p}, 0')
        a(f'v_mfma_f32_16x16x32_bf16 {vr(O0(b), 4)}, {vr(VF[0] + 2 * (b - 1), 4)}, {p}, 0')
        a(f'v_mfma_f32_16x16x32_bf16 {vr(O1(b), 4)}, {vr(VF[1] + 2 * (b - 1), 4)}, {p}, 0')
    for b in range(1, 5):
        a(f'v_rcp_f32 v{SUM(b)}, v{SUM(b)}')
    for b in range(1, 5):
        for o in (O0(b), O1(b)):
            for hh in range(2):
                s = SUM(b)
                a(f'v_pk_mul_f32 {vr(o + 2 * hh, 2)}, {vr(o + 2 * hh, 2)}, {vr(s & ~1, 2)} op_sel:[0,{s & 1}] op_sel_hi:[1,{s & 1}]')
    for b in range(1, 5):
        a(f'v_cvt_pk_bf16_f32 v{PP(b)}, v{O0(b)}, v{O0(b) + 1}')
        a(f'v_cvt_pk_bf16_f32 v{PP(b) + 1}, v{O0(b) + 2}, v{O0(b) + 3}')
        a(f'v_cvt_pk_bf16_f32 v{PP(b) + 2}, v{O1(b)}, v{O1(b) + 1}')
        a(f'v_cvt_pk_bf16_f32 v{PP(b) + 3}, v{O1(b) + 2}, v{O1(b) + 3}')
    for b in range(1, 5):
        a(f'v_permlane16_swap_b32 v{PP(b)}, v{PP(b) + 2}')
        a(f'v_permlane16_swap_b32 v{PP(b) + 1}, v{PP(b) + 3}')
    for b in range(1, 5):
        a(f's_mov_b32 s57, {(b - 1) * 2048}')
        a(f'buffer_store_dwordx4 {vr(PP(b), 4)}, v{OADDR}, {sr(SO, 4)}, s57 offen sc1')
    mark(a, 5)
    a('s_branch c_g2')
    return a

ACC2 = 0
FW = [32, 48, 64]
RES = 80
AR = 96
WB = [224, 228]
VA2 = 232
VRES, VDST = 233, 234

def g2_wreads(s):
    st, kk = s >> 1, s & 1
    f = FW[s % 3]
    out = []
    for cb in range(4):
        for u in range(2):
            out.append(f'ds_read_b64_tr_b16 {vr(f + cb * 4 + 2 * u, 2)}, v{WB[st >> 3] + cb} offset:{(st & 7) * 8192 + kk * 4096 + u * 512}')
    return out

def g2_aloads(s, vm):
    kk = s & 1
    out = []
    if kk == 0 and s > 0:
        out.append('s_add_u32 s78, s78, 16384')
    for rb in range(2):
        out.append(f'buffer_load_dwordx4 {vr(AR + (s % 16) * 8 + 4 * rb, 4)}, v{VA2}, {sr(SO, 4)}, s78 offen offset:{rb * 2048 + kk * 1024}')
        vm.add(('A', s))
    return out

def g2_mfmas(s):
    f = FW[s % 3]
    out = []
    for cb in range(4):
        for rb in range(2):
            q = vr(ACC2 + (rb * 4 + cb) * 4, 4)
            out.append(f'v_mfma_f32_16x16x32_bf16 {q}, {vr(f + cb * 4, 4)}, {vr(AR + (s % 16) * 8 + 4 * rb, 4)}, {q}')
    return out

def g2_compute(a):
    a.label('c_g2')
    vm = VM()
    vm.add('st', 4)
    a('v_and_b32 v246, 15, v247')
    a('v_lshrrev_b32 v245, 4, v247')
    a(f's_lshl_b32 s77, s{S_I2}, 7')
    a(f's_lshl_b32 s57, s{S_W}, 5')
    a('s_add_u32 s77, s77, s57')
    a('v_and_b32 v3, 1, v245')
    a('v_lshlrev_b32 v3, 5, v3')
    a('v_lshrrev_b32 v4, 1, v245')
    a('v_lshl_add_u32 v3, v4, 4, v3')
    a('v_add_u32 v1, s77, v246')
    a('v_lshl_add_u32 v1, v1, 11, v3')
    a(f's_lshl_b32 s57, s{S_J2}, 7')
    a('v_add_u32 v1, s57, v1')
    a(f's_lshl_b32 s57, s{S_I2}, 4')
    a(f's_add_u32 s57, s57, s{S_J2}')
    a('s_lshl_b32 s57, s57, 14')
    a(f's_lshl_b32 s58, s{S_W}, 12')
    a('s_add_u32 s57, s57, s58')
    a('v_lshl_add_u32 v2, v246, 6, v3')
    a('v_add_u32 v2, s57, v2')
    a(f's_cmp_eq_u32 s{S_L}, 0')
    a('s_cselect_b64 vcc, -1, 0')
    a('s_movk_i32 s59, 2048')
    a(f's_cselect_b32 s84, {16 * 2048}, s59')
    a('s_cselect_b32 s85, 64, 1024')
    a(f'v_cndmask_b32 v{VRES}, v2, v1, vcc')
    a(f's_cmp_eq_u32 s{S_L}, 3')
    a('s_cselect_b64 vcc, -1, 0')
    a(f's_cselect_b32 s86, {16 * 2048}, s59')
    a('s_cselect_b32 s87, 64, 1024')
    a(f'v_cndmask_b32 v{VDST}, v2, v1, vcc')
    a('s_add_u32 s58, s84, s85')
    for rb in range(2):
        for p in range(2):
            so = ['0', 's85', 's84', 's58'][rb * 2 + p]
            a(f'buffer_load_dwordx4 {vr(RES + (rb * 2 + p) * 4, 4)}, v{VRES}, {sr(SX, 4)}, {so} offen')
            vm.add('res')
    vm.wait(a, lambda t: t == 'st')
    signal(a, 'o', 0, S_I, S_J)
    mark(a, 6)
    a('v_lshrrev_b32 v3, 2, v246')
    a('v_and_b32 v4, 3, v246')
    a('v_lshrrev_b32 v5, 1, v3')
    a('v_and_b32 v6, 1, v245')
    a('v_lshl_or_b32 v5, v6, 1, v5')
    a('v_lshlrev_b32 v5, 1, v5')
    a('v_lshrrev_b32 v6, 1, v4')
    a('v_xor_b32 v6, v6, v5')
    a('v_lshlrev_b32 v6, 4, v6')
    a('v_and_b32 v7, 1, v4')
    a('v_lshl_add_u32 v6, v7, 3, v6')
    a('v_lshl_add_u32 v7, v245, 3, v3')
    a('v_lshl_add_u32 v6, v7, 7, v6')
    for cb in range(4):
        a(f'v_xor_b32 v{WB[0] + cb}, {cb * 32}, v6')
    for cb in range(4):
        a(f'v_add_u32 v{WB[0] + cb}, {B2}, v{WB[0] + cb}')
        a(f'v_add_u32 v{WB[1] + cb}, 0x10000, v{WB[0] + cb}')
    a(f'v_lshlrev_b32 v{VA2}, 4, v247')
    a(f's_lshl_b32 s57, s{S_W}, 12')
    a(f'v_add_u32 v{VA2}, s57, v{VA2}')
    a(f's_lshl_b32 s78, s{S_I2}, 18')
    for r in range(32):
        a(f'v_mov_b32 v{ACC2 + r}, 0')
    a('s_barrier')
    mark(a, 7)
    for s in range(NP):
        for x in g2_aloads(s, vm): a(x)
    for r in g2_wreads(0) + g2_wreads(1):
        a(r)
    mark(a, 8)
    for s in range(32):
        n = vm.need(lambda t: t == ('A', s))
        a(f's_waitcnt vmcnt({n}) lgkmcnt({8 if s < 31 else 0})')
        if s == 31:
            a('s_barrier')
        other = []
        wr = g2_wreads(s + 2) if s + 2 < 32 else []
        al = g2_aloads(s + NP, vm) if s + NP < 32 else []
        other = wr[:4] + al + wr[4:]
        interleave(a, g2_mfmas(s), other, per=2)
    mark(a, 9)
    for rb in range(2):
        for p in range(2):
            for r in range(4):
                a(f'v_permlane16_swap_b32 v{ACC2 + (rb * 4 + 2 * p) * 4 + r}, v{ACC2 + (rb * 4 + 2 * p + 1) * 4 + r}')
    T = 32
    ST = 96
    a('s_add_u32 s58, s86, s87')
    for rb in range(2):
        for p in range(2):
            base = ACC2 + (rb * 4 + 2 * p) * 4
            rs = RES + (rb * 2 + p) * 4
            for d in range(4):
                t = T + 2 * (d & 1)
                a(f'v_lshlrev_b32 v{t}, 16, v{rs + d}')
                a(f'v_and_b32 v{t + 1}, 0xffff0000, v{rs + d}')
                a(f'v_pk_add_f32 {vr(base + 2 * d, 2)}, {vr(base + 2 * d, 2)}, {vr(t, 2)}')
            for d in range(4):
                a(f'v_cvt_pk_bf16_f32 v{rs + d}, v{base + 2 * d}, v{base + 2 * d + 1}')
            so = ['0', 's87', 's86', 's58'][rb * 2 + p]
            a(f'buffer_store_dwordx4 {vr(rs, 4)}, v{VDST}, {sr(SD, 4)}, {so} offen sc1')
    a(f's_cmp_eq_u32 s{S_L}, 3')
    a('s_cbranch_scc1 c_done')
    for rb in range(2):
        s2, q2 = ST + 4 * rb, ST + 4 * rb + 2
        base = ACC2 + rb * 16
        a(f'v_pk_add_f32 {vr(s2, 2)}, {vr(base, 2)}, {vr(base + 2, 2)}')
        a(f'v_pk_mul_f32 {vr(q2, 2)}, {vr(base, 2)}, {vr(base, 2)}')
        a(f'v_pk_fma_f32 {vr(q2, 2)}, {vr(base + 2, 2)}, {vr(base + 2, 2)}, {vr(q2, 2)}')
        for d in range(2, 8):
            pr = vr(base + 2 * d, 2)
            a(f'v_pk_add_f32 {vr(s2, 2)}, {vr(s2, 2)}, {pr}')
            a(f'v_pk_fma_f32 {vr(q2, 2)}, {pr}, {pr}, {vr(q2, 2)}')
        a(f'v_add_f32 v{s2}, v{s2}, v{s2 + 1}')
        a(f'v_add_f32 v{s2 + 1}, v{q2}, v{q2 + 1}')
    vals = [ST, ST + 1, ST + 4, ST + 5]
    for swap in ('v_permlane32_swap_b32', 'v_permlane16_swap_b32'):
        for n, v in enumerate(vals):
            a(f'v_mov_b32 v{T + n}, v{v}')
        for n, v in enumerate(vals):
            a(f'{swap} v{v}, v{T + n}')
        for n, v in enumerate(vals):
            a(f'v_add_f32 v{v}, v{v}, v{T + n}')
    a('v_add_u32 v40, s77, v246')
    a('v_lshlrev_b32 v40, 3, v40')
    a(f's_lshl_b32 s57, s{S_J2}, 14')
    a('s_mov_b32 exec_hi, 0')
    a('s_mov_b32 exec_lo, 0xffff')
    a(f'buffer_store_dwordx2 {vr(ST, 2)}, v40, {sr(SSO, 4)}, s57 offen sc1')
    a(f'buffer_store_dwordx2 {vr(ST + 4, 2)}, v40, {sr(SSO, 4)}, s57 offen offset:128 sc1')
    a('s_mov_b64 exec, -1')
    a('s_waitcnt vmcnt(0)')
    signal(a, 'x', 1, S_I2, S_J2)
    mark(a, 10)

LA, LX, LB = 10, 14, 15
LAT = 40
LB2 = 25
VPX, VPO = 28, 29
VSTA, VSTL, VL4 = 32, 33, 34
VWP, VOP = 35, 36
S_XS = 85
S_EX0 = 84
S_CHK = 86

def g1_issue_A(a, vm, st):
    slot = (st % 3) * SLOT
    a(f's_mul_i32 s57, s{S_XS}, {st}')
    a(f's_add_u32 m0, s70, {slot}')
    for n in range(4):
        if n == 0: a(f's_mov_b32 exec_lo, s{S_EX0}')
        a(f'buffer_load_dwordx4 v{LA + n}, {sr(SX, 4)}, s57 offen lds')
        if n == 0: a('s_mov_b32 exec_lo, -1')
        if n < 3: a('s_add_u32 m0, m0, 1024')
    a(f's_add_u32 m0, s71, {slot}')
    a('s_mov_b32 exec_hi, 0')
    a(f'buffer_load_dwordx4 v{LX}, {sr(SX, 4)}, s57 offen lds')
    a('s_mov_b32 exec_hi, -1')
    vm.add(('A', st), 5)

def g1_issue_B(a, vm, st):
    slot = (st % 3) * SLOT
    a(f's_mov_b32 s58, {st * 64 * 6144}')
    a(f's_add_u32 m0, s72, {slot}')
    for n in range(6):
        a(f'buffer_load_dwordx4 v{LB + n}, {sr(SW, 4)}, s58 offen lds')
        if n < 5: a('s_add_u32 m0, m0, 1024')
    vm.add(('B', st), 6)

def g1_issue(a, vm, st):
    g1_issue_A(a, vm, st)
    g1_issue_B(a, vm, st)

def stage_wait(a, vm, st):
    vm.wait(a, lambda t: t in (('A', st), ('B', st)))

def xaddr_rm(a, dst, vR, vc):
    a(f'v_lshlrev_b32 v{dst}, 4, v{vc}')
    a(f'v_lshl_add_u32 v{dst}, v{vR}, 11, v{dst}')

def xaddr_tiled(a, dst, vR, vc, t0, t1):
    a(f'v_ashrrev_i32 v{t0}, 7, v{vR}')
    a(f'v_lshlrev_b32 v{dst}, 18, v{t0}')
    a(f'v_bfe_u32 v{t0}, v{vR}, 4, 3')
    a(f'v_lshl_add_u32 v{dst}, v{t0}, 11, v{dst}')
    a(f'v_lshrrev_b32 v{t0}, 2, v{vc}')
    a(f'v_lshl_add_u32 v{dst}, v{t0}, 10, v{dst}')
    a(f'v_and_b32 v{t0}, 15, v{vR}')
    a(f'v_lshl_add_u32 v{dst}, v{t0}, 6, v{dst}')
    a(f'v_and_b32 v{t0}, 3, v{vc}')
    a(f'v_lshl_add_u32 v{dst}, v{t0}, 4, v{dst}')

def loader_setup(a):
    lw = S_H
    a(f's_sub_u32 s{lw}, s{S_W}, 4')
    a(f's_lshl_b32 s70, s{lw}, 12')
    a(f's_lshl_b32 s71, s{lw}, 9')
    a('s_add_u32 s71, s71, 16384')
    a(f's_mul_i32 s72, s{lw}, 6144')
    a(f's_add_u32 s72, s72, {BOFF}')
    a(f's_lshl_b32 s73, s{lw}, 11')
    a(f's_add_u32 s73, s73, {B2}')
    a(f's_cmp_eq_u32 s{lw}, 0')
    a(f's_cselect_b32 s{S_EX0}, 0xffffff00, -1')
    a(f's_cselect_b32 s{S_CHK}, 1, 0')
    a(f's_mov_b32 s{S_XS}, 128')
    a('v_lshrrev_b32 v1, 3, v247')
    a('v_and_b32 v2, 7, v247')
    a(f'v_mov_b32 v5, {OOB}')
    a('v_lshrrev_b32 v7, 1, v1')
    a('v_and_b32 v6, 1, v7')
    a('s_mov_b32 s65, 6144')
    a('v_mul_lo_u32 v8, v1, s65')
    for n in range(6):
        a(f'v_or_b32 v9, {(n & 1) << 1}, v6')
        a('v_lshlrev_b32 v9, 1, v9')
        a('v_xor_b32 v9, v9, v2')
        a('v_lshl_add_u32 v9, v9, 4, v8')
        a(f's_mul_i32 s65, s{lw}, 6')
        a(f's_add_u32 s65, s65, {n}')
        a('s_lshr_b32 s66, s65, 3')
        a('s_and_b32 s65, s65, 7')
        a(f's_mul_i32 s65, s65, {8 * 6144}')
        a('s_lshl_b32 s66, s66, 11')
        a('s_add_u32 s65, s65, s66')
        a(f's_lshl_b32 s66, s{S_J}, 7')
        a('s_add_u32 s65, s65, s66')
        a(f'v_add_u32 v{LB + n}, s65, v9')
    a(f's_lshl_b32 s64, s{S_I}, 7')
    a('s_sub_u32 s64, s64, 16')
    a(f's_lshl_b32 s65, s{lw}, 5')
    a('s_add_u32 s65, s65, s64')
    for n in range(4):
        a(f'v_add_u32 v8, {8 * n}, v1')
        a('v_add_u32 v8, s65, v8')
        a(f'v_xor_b32 v9, {4 * (n & 1)}, v7')
        a('v_xor_b32 v9, v9, v2')
        xaddr_rm(a, LA + n, 8, 9)
        xaddr_tiled(a, LAT + n, 8, 9, 3, 4)
        a('v_cmp_gt_i32 vcc, 0, v8')
        a(f'v_cndmask_b32 v{LA + n}, v{LA + n}, v5, vcc')
        a(f'v_cndmask_b32 v{LAT + n}, v{LAT + n}, v5, vcc')
    a(f's_lshl_b32 s65, s{lw}, 2')
    a('s_add_u32 s65, s65, s64')
    a('s_add_u32 s65, s65, 128')
    a('v_add_u32 v8, s65, v1')
    a(f's_lshl_b32 s65, s{lw}, 1')
    a('v_add_u32 v9, s65, v7')
    a('v_and_b32 v9, 7, v9')
    a('v_xor_b32 v9, v9, v2')
    xaddr_rm(a, LX, 8, 9)
    xaddr_tiled(a, LAT + 4, 8, 9, 3, 4)

def loader_setup2(a):
    lw = S_H
    a('v_lshrrev_b32 v1, 3, v247')
    a('v_and_b32 v2, 7, v247')
    a(f'v_mov_b32 v5, {OOB}')
    a('v_lshrrev_b32 v7, 1, v1')
    a('v_and_b32 v6, 1, v7')
    for n in range(2):
        a(f'v_or_b32 v9, {n << 1}, v6')
        a('v_lshlrev_b32 v9, 1, v9')
        a('v_xor_b32 v9, v9, v2')
        a('v_lshlrev_b32 v9, 4, v9')
        a(f's_lshl_b32 s65, s{lw}, 4')
        a(f's_add_u32 s65, s65, {8 * n}')
        a('v_add_u32 v8, s65, v1')
        a('v_lshl_add_u32 v9, v8, 11, v9')
        a(f's_lshl_b32 s65, s{S_J2}, 7')
        a(f'v_add_u32 v{LB2 + n}, s65, v9')
    a('v_and_b32 v8, 15, v247')
    a('v_lshlrev_b32 v8, 2, v8')
    a(f's_lshl_b32 s65, s{S_I2}, 7')
    a(f'v_add_u32 v{VPO}, s65, v8')
    a(f's_max_u32 s66, s{S_I}, 1')
    a('s_sub_u32 s66, s66, 1')
    a('s_lshl_b32 s66, s66, 7')
    a(f's_lshl_b32 s65, s{S_I}, 7')
    a(f'v_add_u32 v{VPX}, s65, v8')
    a('v_add_u32 v9, s66, v8')
    a('v_cmp_le_u32 vcc, 16, v247')
    a(f'v_cndmask_b32 v{VPX}, v{VPX}, v9, vcc')
    a(f's_mul_i32 s65, s{lw}, 36')
    a('v_add_u32 v8, s65, v247')
    a(f'v_lshlrev_b32 v{VSTL}, 2, v8')
    a(f'v_add_u32 v{VSTL}, {T_NM}, v{VSTL}')
    a(f's_lshl_b32 s64, s{S_I}, 7')
    a('s_sub_u32 s64, s64, 16')
    a('v_add_u32 v8, s64, v8')
    a(f'v_lshlrev_b32 v{VSTA}, 3, v8')
    a('v_cmp_gt_i32 vcc, 0, v8')
    a(f'v_cndmask_b32 v{VSTA}, v{VSTA}, v5, vcc')
    a('v_cmp_le_u32 vcc, 36, v247')
    a(f'v_cndmask_b32 v{VSTA}, v{VSTA}, v5, vcc')
    a(f'v_lshlrev_b32 v{VL4}, 2, v247')
    a('v_cmp_le_u32 vcc, 24, v247')
    a('v_cndmask_b32 v8, 0, 1, vcc')
    a('v_mul_u32_u24 v9, 24, v8')
    a('v_sub_u32 v9, v247, v9')
    a('v_lshrrev_b32 v3, 3, v9')
    a('v_and_b32 v9, 7, v9')
    a('v_lshl_add_u32 v9, v8, 6, v9')
    a(f's_and_b32 s65, s{S_I}, 7')
    a('s_lshl_b32 s65, s65, 3')
    a(f's_lshl_b32 s66, s{lw}, 7')
    a('s_add_u32 s65, s65, s66')
    a('v_add_u32 v9, s65, v9')
    a('s_mov_b32 s65, 6144')
    a('v_mul_lo_u32 v9, v9, s65')
    a('v_lshl_add_u32 v9, v3, 11, v9')
    a(f's_lshl_b32 s65, s{S_J}, 7')
    a(f'v_add_u32 v{VWP}, s65, v9')
    a('v_cmp_le_u32 vcc, 48, v247')
    a(f'v_cndmask_b32 v{VWP}, v{VWP}, v5, vcc')
    if 2 * 3 >= PFD:
        a(f's_lshl_b32 s65, s{lw}, 1')
        a(f's_cmp_ge_u32 s65, {PFD}')
        a('s_cselect_b64 vcc, -1, 0')
        a(f'v_cndmask_b32 v{VWP}, v{VWP}, v5, vcc')
    a(f's_and_b32 s65, s{S_J2}, 7')
    a('s_lshl_b32 s65, s65, 8')
    a(f's_lshl_b32 s66, s{lw}, 6')
    a('s_add_u32 s65, s65, s66')
    a('v_add_u32 v9, s65, v247')
    a('v_lshlrev_b32 v9, 7, v9')
    a(f's_lshl_b32 s65, s{S_I2}, 18')
    a(f'v_add_u32 v{VOP}, s65, v9')

def l0_stats(a, vm):
    lw = S_H
    R = 96
    acc = [112, 114, 116, 118]
    for row in range(2):
        s, q = acc[2 * row], acc[2 * row + 1]
        for d in range(8):
            r = R + 8 * row + d
            t = 120 + 2 * (d & 1)
            a(f'v_lshlrev_b32 v{t}, 16, v{r}')
            a(f'v_and_b32 v{t + 1}, 0xffff0000, v{r}')
            if d == 0:
                a(f'v_mov_b32 v{s}, v{t}')
                a(f'v_mov_b32 v{s + 1}, v{t + 1}')
                a(f'v_pk_mul_f32 {vr(q, 2)}, {vr(t, 2)}, {vr(t, 2)}')
            else:
                a(f'v_pk_add_f32 {vr(s, 2)}, {vr(s, 2)}, {vr(t, 2)}')
                a(f'v_pk_fma_f32 {vr(q, 2)}, {vr(t, 2)}, {vr(t, 2)}, {vr(q, 2)}')
    V = [124, 125, 126, 127]
    for n in range(4):
        a(f'v_add_f32 v{V[n]}, v{acc[n]}, v{acc[n] + 1}')
    for mode in ('quad_perm:[1,0,3,2]', 'quad_perm:[2,3,0,1]', 'row_half_mirror', 'row_mirror'):
        for v in V:
            a(f'v_add_f32_dpp v{v}, v{v}, v{v} {mode} row_mask:0xf bank_mask:0xf')
    for swap in ('v_permlane32_swap_b32', 'v_permlane16_swap_b32'):
        for n, v in enumerate(V):
            a(f'v_mov_b32 v{120 + n}, v{v}')
        for n, v in enumerate(V):
            a(f'{swap} v{v}, v{120 + n}')
        for n, v in enumerate(V):
            a(f'v_add_f32 v{v}, v{v}, v{120 + n}')
    a(f's_lshl_b32 s57, s{lw}, 5')
    a(f's_add_u32 s58, s57, s{S_I}')
    a('s_lshl_b32 s58, s58, 7')
    a(f's_lshl_b32 s59, s{S_J}, 2')
    a('s_add_u32 s58, s58, s59')
    a('s_add_u32 s57, s57, 16')
    a(f's_add_u32 s57, s57, s{S_I2}')
    a('s_lshl_b32 s57, s57, 7')
    a(f's_lshl_b32 s59, s{S_J2}, 2')
    a('s_add_u32 s57, s57, s59')
    a('v_mov_b32 v120, s58')
    a('v_mov_b32 v121, s57')
    a('v_cmp_eq_u32 vcc, 1, v247')
    a('v_cndmask_b32 v120, v120, v121, vcc')
    a('v_mov_b32 v121, 0')
    a('s_lshl_b32 s57, s2, 6')
    a(f's_lshl_b32 s58, s{lw}, 4')
    a('s_add_u32 s57, s57, s58')
    a('s_mov_b64 exec, 3')
    a(f'buffer_store_dword v121, v120, {sr(SFL, 4)}, 0 offen sc1')
    a('s_mov_b64 exec, 1')
    a(f'buffer_store_dwordx4 v[124:127], v121, {sr(SSI, 4)}, s57 offen sc1')
    a('s_mov_b64 exec, -1')
    vm.add('st', 2)

def loader(a):
    a.label('loader')
    lw = S_H
    loader_setup(a)
    a(f's_mov_b32 s{S_L}, 0')
    set_layer_srds(a)
    vm = VM()
    mark(a, 0)
    g1_issue(a, vm, 0)
    g1_issue(a, vm, 1)
    a('v_lshlrev_b32 v3, 4, v247')
    a('s_lshl_b32 s57, s2, 3')
    a(f's_lshl_b32 s58, s{lw}, 1')
    a('s_add_u32 s57, s57, s58')
    a('s_lshl_b32 s57, s57, 11')
    for n in range(4):
        a(f'buffer_load_dwordx4 {vr(96 + 4 * n, 4)}, v3, {sr(SX, 4)}, s57 offen')
        if n < 3: a('s_add_u32 s57, s57, 1024')
        vm.add('row')
    loader_setup2(a)
    mark(a, 2)
    stage_wait(a, vm, 0)
    a('s_barrier')
    mark(a, 3)
    g1_issue(a, vm, 2)
    stage_wait(a, vm, 1)
    a('s_barrier')
    g1_issue(a, vm, 3)
    stage_wait(a, vm, 2)
    a('s_barrier')
    g1_issue(a, vm, 4)
    l0_stats(a, vm)
    stage_wait(a, vm, 3)
    a('s_barrier')
    g1_issue(a, vm, 5)
    vm.wait(a, lambda t: t == 'st')
    count4(a, 'pro', 2)
    a('v_mov_b32 v236, 0')
    a(f'buffer_store_byte v237, v236, {sr(SDBG, 4)}, s2 offen sc1')
    a.label('sig_pro_skip')
    a('s_mov_b64 exec, -1')
    a('s_barrier')
    a('s_branch l_t3')
    a.label('l_layer')
    vm = VM()
    vm.add('pre', 18)
    mark(a, 0)
    a(f's_cmp_lg_u32 s{lw}, 0')
    a('s_cbranch_scc1 l_nox')
    a(f's_lshl_b32 s67, s{S_L}, 1')
    a('s_sub_u32 s67, s67, 1')
    a('s_lshl_b32 s67, s67, 11')
    poll(a, 'x', 32, VPX, 67)
    a.label('l_nox')
    mark(a, 1)
    a('s_barrier')
    g1_issue_A(a, vm, 0)
    g1_issue_A(a, vm, 1)
    mark(a, 2)
    vm.wait(a, lambda t: t == ('A', 0))
    a('s_barrier')
    mark(a, 3)
    g1_issue_A(a, vm, 2)
    vm.wait(a, lambda t: t == ('A', 1))
    a('s_barrier')
    g1_issue(a, vm, 3)
    for t in (1, 2, 3):
        stage_wait(a, vm, t + 1)
        a('s_barrier')
        if t < 3: g1_issue(a, vm, t + 3)
    a.label('l_t3')
    vm = VM()
    vm.add(('A', 4), 5); vm.add(('B', 4), 6); vm.add(('A', 5), 5); vm.add(('B', 5), 6)
    g1_issue(a, vm, 6)
    for t in range(4, 13):
        a('s_waitcnt vmcnt(11)')
        if t == 9:
            a(f's_cmp_eq_u32 s{S_CHK}, 0')
            a('s_cbranch_scc1 l_nochk')
            a('s_mov_b32 s66, 0')
            a.label('l_chk')
            a('v_cmp_eq_u32 vcc, 0x01010101, v31')
            a('s_cmp_eq_u64 vcc, -1')
            a('s_cbranch_scc1 l_nochk')
            a('s_add_u32 s66, s66, 1')
            a(f's_cmp_lt_u32 s66, {SPIN_MAX}')
            a('s_cbranch_scc0 l_nochk')
            a('s_sleep 1')
            a(f'buffer_load_dword v31, v{VL4}, {sr(SDBG, 4)}, 0 offen sc1')
            a('s_waitcnt vmcnt(0)')
            a('s_branch l_chk')
            a.label('l_nochk')
            a(f's_mov_b32 s{S_CHK}, 0')
        a('s_barrier')
        g1_issue(a, vm, t + 3)
        if t == 7:
            a(f's_cmp_eq_u32 s{S_CHK}, 0')
            a('s_cbranch_scc1 l_nodbg')
            a(f'buffer_load_dword v31, v{VL4}, {sr(SDBG, 4)}, 0 offen sc1')
            a.label('l_nodbg')
    for jj in range(16):
        a(f's_mov_b32 s57, {jj * 16384}')
        a(f'buffer_load_dwordx2 {vr(64 + 2 * jj, 2)}, v{VSTA}, {sr(SSI, 4)}, s57 offen')
    a('s_waitcnt vmcnt(27)')
    a('s_barrier')
    a('s_waitcnt vmcnt(16)')
    a('s_barrier')
    for jj in range(1, 16):
        a(f's_waitcnt vmcnt({15 - jj})')
        a(f'v_pk_add_f32 v[64:65], v[64:65], {vr(64 + 2 * jj, 2)}')
    a('v_mul_f32 v64, 0x3a800000, v64')
    a('v_mul_f32 v65, 0x3a800000, v65')
    a('v_fma_f32 v65, -v64, v64, v65')
    a('v_max_f32 v65, 0, v65')
    a('v_add_f32 v65, 0x3727c5ac, v65')
    a('v_rsq_f32 v65, v65')
    a('v_sub_f32 v64, 0, v64')
    a('s_mov_b32 exec_hi, 0xf')
    a(f'ds_write_b32 v{VSTL}, v64')
    a(f'ds_write_b32 v{VSTL}, v65 offset:576')
    a('s_mov_b32 exec_hi, -1')
    a('s_waitcnt lgkmcnt(0)')
    a('s_barrier')
    mark(a, 4)
    def g2_B(st):
        a(f's_add_u32 m0, s73, {st * 8192}')
        a(f's_mov_b32 s58, {st * 64 * 2048}')
        a(f'buffer_load_dwordx4 v{LB2}, {sr(SWO, 4)}, s58 offen lds')
        a('s_add_u32 m0, m0, 1024')
        a(f'buffer_load_dwordx4 v{LB2 + 1}, {sr(SWO, 4)}, s58 offen lds')
    g2_B(0); g2_B(1)
    a(f's_cmp_ge_u32 s{S_L}, 2')
    a('s_cbranch_scc1 l_nocs')
    a('s_barrier')
    a.label('l_nocs')
    g2_B(2)
    a('s_barrier')
    for st in range(3, 16):
        g2_B(st)
    a(f's_cmp_lg_u32 s{lw}, 0')
    a('s_cbranch_scc1 l_noo')
    a(f's_lshl_b32 s67, s{S_L}, 12')
    poll(a, 'o', 16, VPO, 67)
    a.label('l_noo')
    a('s_waitcnt vmcnt(0)')
    mark(a, 5)
    a('s_barrier')
    if OPF:
        a(f'buffer_load_dword v31, v{VOP}, {sr(SO, 4)}, 0 offen')
    a(f's_cmp_eq_u32 s{S_L}, 3')
    a('s_cbranch_scc1 l_last')
    if PFD:
        sel_w(a, 1)
        a(f'buffer_load_dword v31, v{VWP}, {sr(SW, 4)}, 0 offen')
    mark(a, 6)
    a('s_barrier')
    mark(a, 7)
    a(f's_add_u32 s{S_L}, s{S_L}, 1')
    set_layer_srds(a)
    a(f's_mov_b32 s{S_XS}, 16384')
    for n in range(5):
        a(f'v_mov_b32 v{LA + n}, v{LAT + n}')
    dummy = VM()
    for st in range(3):
        g1_issue_B(a, dummy, st)
    prof_next_layer(a)
    a('s_branch l_layer')
    a.label('l_last')
    mark(a, 6)
    a('s_barrier')
    mark(a, 7)
    prof_dump(a)
    a('s_endpgm')

def gen_main():
    a = Asm()
    a.label(KERN)
    a('s_cmp_ge_u32 s2, 256')
    a('s_cbranch_scc1 m_exit')
    a(f's_load_dwordx2 {sr(P_X, 2)}, s[0:1], 0')
    a(f's_load_dwordx2 {sr(P_WA, 2)}, s[0:1], 8')
    a(f's_load_dwordx2 {sr(P_OA, 2)}, s[0:1], 16')
    a(f's_load_dwordx2 {sr(P_WB, 2)}, s[0:1], 32')
    a(f's_load_dwordx2 {sr(P_OB, 2)}, s[0:1], 40')
    a(f's_load_dwordx2 {sr(P_OUT, 2)}, s[0:1], 48')
    a(f's_load_dwordx2 {sr(SDBG, 2)}, s[0:1], 56')
    a(f's_load_dwordx2 {sr(P_WS, 2)}, s[0:1], 64')
    a('s_and_b32 s57, s2, 7')
    a('s_lshr_b32 s58, s2, 3')
    a(f's_and_b32 s{S_I}, s57, 1')
    a(f's_lshl_b32 s{S_I}, s{S_I}, 3')
    a('s_and_b32 s59, s58, 7')
    a(f's_add_u32 s{S_I}, s{S_I}, s59')
    a(f's_lshr_b32 s{S_J}, s57, 1')
    a(f's_lshl_b32 s{S_J}, s{S_J}, 2')
    a('s_lshr_b32 s59, s58, 3')
    a(f's_add_u32 s{S_J}, s{S_J}, s59')
    a(f's_and_b32 s{S_I2}, s57, 3')
    a(f's_lshl_b32 s{S_I2}, s{S_I2}, 2')
    a('s_and_b32 s59, s58, 3')
    a(f's_add_u32 s{S_I2}, s{S_I2}, s59')
    a(f's_lshr_b32 s{S_J2}, s57, 2')
    a(f's_lshl_b32 s{S_J2}, s{S_J2}, 3')
    a('s_lshr_b32 s59, s58, 2')
    a(f's_add_u32 s{S_J2}, s{S_J2}, s59')
    a('v_lshrrev_b32 v1, 6, v0')
    a(f'v_readfirstlane_b32 s{S_W}, v1')
    a('v_and_b32 v247, 63, v0')
    if PROF:
        a(f's_lshl_b32 s57, s{S_W}, 8')
        a(f's_add_u32 s57, s57, {PROF_LDS}')
        a('v_mov_b32 v254, s57')
    a('s_waitcnt lgkmcnt(0)')
    const_srds(a)
    a(f's_cmp_ge_u32 s{S_W}, 4')
    a('s_cbranch_scc1 loader')
    a(f's_and_b32 s{S_H}, s{S_W}, 1')
    a(f's_mov_b32 s{S_L}, 0')
    a(f'v_mov_b32 v1, {T_CNT}')
    for r in range(2, 6): a(f'v_mov_b32 v{r}, 0')
    a('ds_write_b128 v1, v[2:5]')
    a(f's_mul_i32 s57, s{S_W}, 6')
    a('v_add_u32 v1, s57, v247')
    a('v_lshrrev_b32 v2, 3, v1')
    a('v_and_b32 v1, 7, v1')
    a(f's_and_b32 s57, s{S_I}, 7')
    a('s_lshl_b32 s57, s57, 3')
    a('v_add_u32 v1, s57, v1')
    a('s_mov_b32 s57, 6144')
    a('v_mul_lo_u32 v1, v1, s57')
    a('v_lshl_add_u32 v1, v2, 11, v1')
    a(f's_lshl_b32 s57, s{S_J}, 7')
    a('v_add_u32 v1, s57, v1')
    a(f'v_mov_b32 v5, {OOB}')
    a('v_cmp_le_u32 vcc, 6, v247')
    a(f'v_cndmask_b32 v{PFA}, v1, v5, vcc')
    a.label('c_layer')
    set_layer_srds(a)
    mark(a, 0)
    if PFD:
        a(f's_cmp_lg_u32 s{S_L}, 0')
        a('s_cbranch_scc1 c_nopf')
        for st in range(2, PFD):
            a(f's_mov_b32 s57, {st * 64 * 6144}')
            a(f'buffer_load_dword v{PFD_}, v{PFA}, {sr(SW, 4)}, s57 offen')
        a.label('c_nopf')
        a(f's_mov_b32 s88, {PFD * 64 * 6144}')
    a('v_lshrrev_b32 v1, 3, v247')
    a(f's_mov_b32 s57, {SLOT}')
    a('v_mul_lo_u32 v1, v1, s57')
    a('v_and_b32 v2, 7, v247')
    a('v_lshl_add_u32 v1, v2, 4, v1')
    for r in range(4, 8): a(f'v_mov_b32 v{r}, 0x3f803f80')
    a('s_mov_b32 exec_hi, 0')
    a('s_mov_b32 exec_lo, 0xffffff')
    a('ds_write_b128 v1, v[4:7]')
    a('s_mov_b64 exec, -1')
    a('v_and_b32 v1, 15, v247')
    a('v_lshrrev_b32 v2, 4, v247')
    a('v_lshrrev_b32 v3, 1, v1')
    a('v_xor_b32 v4, v2, v3')
    a('v_lshlrev_b32 v4, 4, v4')
    a(f'v_lshl_add_u32 v{XA0}, v1, 7, v4')
    a(f'v_xor_b32 v{XA1}, 64, v{XA0}')
    a('v_lshrrev_b32 v3, 2, v1')
    a('v_and_b32 v4, 3, v1')
    a('v_lshrrev_b32 v5, 1, v3')
    a('v_and_b32 v6, 1, v2')
    a('v_lshl_or_b32 v5, v6, 1, v5')
    a('v_lshlrev_b32 v5, 1, v5')
    a('v_lshrrev_b32 v6, 1, v4')
    a(f's_lshl_b32 s57, s{S_H}, 2')
    a('v_add_u32 v6, s57, v6')
    a('v_xor_b32 v6, v6, v5')
    a('v_lshlrev_b32 v6, 4, v6')
    a('v_and_b32 v7, 1, v4')
    a('v_lshl_add_u32 v6, v7, 3, v6')
    a('v_lshl_add_u32 v7, v2, 3, v3')
    a('v_lshl_add_u32 v6, v7, 7, v6')
    a(f'v_add_u32 v{WA0}, {BOFF}, v6')
    a(f'v_xor_b32 v{WA1}, 32, v{WA0}')
    for r in range(104):
        a(f'v_mov_b32 v{r}, 0')
    for r in range(4):
        a(f'v_mov_b32 v{QX + r}, 0')
    a('s_waitcnt lgkmcnt(0)')
    a(f's_cmp_eq_u32 s{S_L}, 0')
    a('s_cbranch_scc1 c_noy')
    a('s_barrier')
    a.label('c_noy')
    a(f's_cmp_ge_u32 s{S_W}, 2')
    a('s_cbranch_scc1 g1c1')
    a.extend(g1_compute(0))
    a.extend(g1_compute(1))
    g2_compute(a)
    a(f's_add_u32 s{S_L}, s{S_L}, 1')
    prof_next_layer(a)
    a('s_branch c_layer')
    a.label('c_done')
    mark(a, 10)
    prof_dump(a)
    a('s_endpgm')
    loader(a)
    a.label('m_exit')
    a('s_endpgm')
    return fix_hazards(a.lines)

def desc(name, vgpr=256, sgpr=96):
    return f'''.amdhsa_kernel {name}
  .amdhsa_next_free_vgpr {vgpr}
  .amdhsa_next_free_sgpr {sgpr}
  .amdhsa_accum_offset {vgpr}
  .amdhsa_group_segment_fixed_size 0
  .amdhsa_kernarg_size 72
  .amdhsa_user_sgpr_count 2
  .amdhsa_user_sgpr_kernarg_segment_ptr 1
  .amdhsa_system_sgpr_workgroup_id_x 1
.end_amdhsa_kernel
'''

def build():
    out = [HEADER.rstrip()]
    out.append(f'; @launch grid=(256,1,1) block=(512,1,1) lds={LDS_BYTES}')
    out.append('.amdgcn_target "amdgcn-amd-amdhsa--gfx950"')
    out.append('.text')
    out.append(f'.globl {KERN}')
    out.append('.p2align 8')
    out.append(f'.type {KERN},@function')
    out.extend(gen_main())
    out.append('.section .rodata,"a"')
    out.append('.p2align 6')
    out.append(desc(KERN))
    return '\n'.join(out) + '\n'

if __name__ == '__main__':
    dst = sys.argv[1] if len(sys.argv) > 1 else f'cdna_kernels/{NAME}.s'
    open(dst, 'w').write(build())
    print('wrote', dst)
```
